```python
import torch

def _softmax(x, axis=-1):
    return torch.softmax(x, dim=axis)
def _gelu(x):
    return torch.nn.functional.gelu(x, approximate="tanh")
def _silu(x):
    return torch.nn.functional.silu(x)
def _sigmoid(x):
    return torch.sigmoid(x)
def _layernorm(x, axis=-1, eps=1e-5):
    m = x.mean(dim=axis, keepdim=True)
    v = x.var(dim=axis, keepdim=True, unbiased=False)
    return (x - m) / torch.sqrt(v + eps)
def _scatter_add(tgt, idx, src, axis=0):
    return tgt.clone().index_add_(axis, idx, src)
def _segment_sum(src, seg, n):
    out = torch.zeros((n,) + src.shape[1:], dtype=src.dtype)
    return out.index_add_(0, seg, src)
def _pad(x, pw):
    flat = tuple(v for pair in reversed(pw) for v in pair)
    return torch.nn.functional.pad(x, flat)

kernel_name = 'gated_mix__ssm_conv_s4d__glu_gated_swiglu__prompt'

def setup_inputs():

    _w = (lambda a: (lambda t: t.to(torch.bfloat16) if t.is_floating_point() else t)(torch.as_tensor(a)))
    def _A_setup():
        Bsz, L, D, N = 1, 2048, 512, 128
        return {
            "u": _w((lambda *s: torch.randn(*s, dtype=torch.bfloat16) * 0.05)(Bsz, L, D)),
            "log_A_real": _w((lambda *s: torch.randn(*s, dtype=torch.bfloat16) * 3.2)(D, N) * 0.5),
            "A_imag": _w((lambda *s: torch.randn(*s, dtype=torch.bfloat16) * 0.05)(D, N) * 3.14),
            "C_real": _w((lambda *s: torch.randn(*s, dtype=torch.bfloat16) * 0.05)(D, N) / N ** 0.5),
            "C_imag": _w((lambda *s: torch.randn(*s, dtype=torch.bfloat16) * 0.1)(D, N) / N ** 0.5),
            "log_dt": _w((lambda *s: torch.randn(*s, dtype=torch.bfloat16) * 0.05)(D) * 0.5 - 4.0),
            "D_skip": _w((lambda *s: torch.randn(*s, dtype=torch.bfloat16) * 0.05)(D)),
        }
    _A_in = _A_setup()

    def _B_setup():
        B, S, D, F = 1, 2048, 512, 1792
        return {
            "x": _w((lambda *s: torch.randn(*s, dtype=torch.bfloat16) * 0.05)(B, S, D)),
            "w1": _w((lambda *s: torch.randn(*s, dtype=torch.bfloat16) * 0.8)(D, F) * (2.0 / D) ** 0.5),
            "w3": _w((lambda *s: torch.randn(*s, dtype=torch.bfloat16) * 0.8)(D, F) * (2.0 / D) ** 0.5),
            "w2": _w((lambda *s: torch.randn(*s, dtype=torch.bfloat16) * 0.8)(F, D) * (2.0 / F) ** 0.5),
        }
    _B_in = _B_setup()

    return {
        "A_u": _A_in["u"],
        "A_log_A_real": _A_in["log_A_real"],
        "A_A_imag": _A_in["A_imag"],
        "A_C_real": _A_in["C_real"],
        "A_C_imag": _A_in["C_imag"],
        "A_log_dt": _A_in["log_dt"],
        "A_D_skip": _A_in["D_skip"],
        "B_x": _B_in["x"],
        "B_w1": _B_in["w1"],
        "B_w3": _B_in["w3"],
        "B_w2": _B_in["w2"],
        "gate_w": _w((lambda *s: torch.randn(*s, dtype=torch.bfloat16) * 0.05)(512) * 16.0),
    }

def reference(A_u, A_log_A_real, A_A_imag, A_C_real, A_C_imag, A_log_dt, A_D_skip, B_x, B_w1, B_w3, B_w2, gate_w):
    def _A_ref(u, log_A_real, A_imag, C_real, C_imag, log_dt, D_skip):
        L = u.shape[1]
        dt = torch.exp(log_dt)
        A = -torch.exp(log_A_real) + 1j * A_imag
        C = (C_real + 1j * C_imag) * dt[:, None]
        pos = (lambda x, dt: x.to(dt))(torch.arange(L), log_dt.dtype)
        P = torch.exp((A * dt[:, None])[:, :, None] * pos[None, None, :])
        K = 2.0 * torch.einsum("dn,dnl->dl", C, P).real
        L2 = 2 * L
        u_t = (lambda x, *d: x.permute(*d))(u, 0, 2, 1)
        Kf = (lambda x, *a, **k: torch.fft.rfft(x.float(), *a, **k))(K, L2)
        Uf = (lambda x, *a, **k: torch.fft.rfft(x.float(), *a, **k))(u_t, L2)
        y = (lambda x, *a, **k: torch.fft.irfft(x, *a, **k).to(torch.bfloat16))(Uf * Kf[None, :, :], L2)[:, :, :L]
        y = (lambda x, *d: x.permute(*d))(y, 0, 2, 1)
        return y + u * D_skip[None, None, :]

    def _B_ref(x, w1, w3, w2):
        gate = torch.einsum("bsd,df->bsf", x, w1)
        up = torch.einsum("bsd,df->bsf", x, w3)
        h = _silu(gate) * up
        out = torch.einsum("bsf,fd->bsd", h, w2)
        return out

    x = A_u
    g = _sigmoid((x * gate_w).sum(-1, keepdims=True))
    a = _A_ref(x, A_log_A_real, A_A_imag, A_C_real, A_C_imag, A_log_dt, A_D_skip)
    b = _B_ref(x, B_w1, B_w3, B_w2)
    return g * a + (1 - g) * b
```

```python
import re

REG_RE = re.compile(r"(?<![\w.])(-?)(?:abs\()?([vas])(?:(\d+)|\[(\d+):(\d+)\])\)?(?![\w])")

def regs_of(tok):
    tok = tok.strip()
    out = set()
    if tok in ("vcc", "vcc_lo", "vcc_hi"): return {("s", "vcc")}
    if tok in ("exec", "exec_lo", "exec_hi"): return {("s", "exec")}
    if tok == "m0": return {("s", "m0")}
    m = REG_RE.fullmatch(tok)
    if not m: return out
    c = m.group(2)
    if m.group(3) is not None: return {(c, int(m.group(3)))}
    return {(c, i) for i in range(int(m.group(4)), int(m.group(5)) + 1)}

def split_ops(s):
    ops, depth, cur = [], 0, ""
    for ch in s:
        if ch in "[(": depth += 1
        if ch in "])": depth -= 1
        if ch == "," and depth == 0: ops.append(cur.strip()); cur = ""
        else: cur += ch
    if cur.strip(): ops.append(cur.strip())
    return ops

TRANS = ("v_exp_f32", "v_log_f32", "v_rcp_f32", "v_rsq_f32", "v_sqrt_f32", "v_sin_f32", "v_cos_f32")

class Ins:
    def __init__(self, text):
        self.text = text
        t = text.split(";")[0].strip()
        parts = t.split(None, 1)
        self.op = parts[0] if parts else ""
        rest = parts[1] if len(parts) > 1 else ""
        ops = split_ops(rest)
        self.mods = ""
        if ops:
            last = ops[-1].split(None, 1)
            ops[-1] = last[0]
            if len(last) > 1: self.mods = last[1]
        self.ops = ops
        op = self.op
        self.is_mfma = op.startswith("v_mfma")
        self.is_valu = op.startswith("v_") and not self.is_mfma
        self.is_salu = op.startswith("s_") and not op.startswith(("s_load", "s_waitcnt", "s_barrier", "s_nop", "s_memtime", "s_memrealtime", "s_endpgm", "s_branch", "s_cbranch", "s_sleep", "s_setprio", "s_buffer_load"))
        self.is_smem = op.startswith(("s_load", "s_memtime", "s_memrealtime", "s_buffer_load"))
        self.is_ds = op.startswith("ds_")
        self.is_vmem = op.startswith(("buffer_", "global_"))
        self.is_ldsdma = self.is_vmem and (" lds" in (" " + self.mods) or "load_lds" in op)
        self.is_store = self.is_vmem and "store" in op
        self.is_trans = op.replace("_e32", "").replace("_e64", "") in TRANS
        self.is_dpp = "_dpp" in op or "wave_" in self.mods or "row_" in self.mods or "quad_perm" in self.mods
        self.is_label = op.endswith(":")
        self.is_branch = op.startswith(("s_branch", "s_cbranch"))
        R = [regs_of(o) for o in ops]
        rd, wr = set(), set()
        if self.is_label or op.startswith((".", "s_waitcnt", "s_barrier", "s_nop", "s_endpgm", "s_branch", "s_cbranch", "s_sleep", "s_setprio")) or op == "":
            pass
        elif self.is_ds:
            if op.startswith(("ds_write", "ds_add")) :
                for r in R: rd |= r
            else:
                wr |= R[0]
                for r in R[1:]: rd |= r
        elif self.is_vmem:
            if op.startswith(("buffer_wbl2", "buffer_inv")):
                pass
            elif self.is_store or self.is_ldsdma or ("atomic" in op and "sc0" not in self.mods):
                for r in R: rd |= r
                if self.is_ldsdma: rd.add(("s", "m0"))
            else:
                wr |= R[0]
                for r in R[1:]: rd |= r
                if "d16" in op or "atomic" in op: rd |= R[0]
        elif op.startswith(("s_cmp", "s_bitcmp")):
            for r in R: rd |= r
            wr.add(("s", "scc"))
        elif op.startswith("v_cmp"):
            wr |= R[0]
            for r in R[1:]: rd |= r
        elif op.startswith("v_permlane") and "swap" in op:
            rd |= R[0] | R[1]; wr |= R[0] | R[1]
        else:
            wr |= R[0]
            for r in R[1:]: rd |= r
            if op.startswith(("v_fmac", "v_dot2c", "v_pk_fmac", "v_writelane")) or self.is_dpp: rd |= R[0]
            if op.startswith(("v_add_co", "v_addc_co", "v_sub_co")): wr |= R[1]; rd -= R[1] if not op.startswith("v_addc") else set()
            if "saveexec" in op: wr.add(("s", "exec")); rd.add(("s", "exec"))
            if op.startswith("v_cndmask") and len(ops) == 3: rd.add(("s", "vcc"))
        self.rd, self.wr = rd, wr
        if self.is_mfma:
            self.srcA, self.srcB, self.srcC, self.dst = R[1], R[2], R[3], R[0]
            self.passes = 8 if "32x32" in op else 4
    def slots(self):
        if self.op == "s_nop": return int(self.ops[0], 0) + 1
        if self.is_label or self.op.startswith(".") or self.op == "": return 0
        return 1

class Prog:
    def __init__(self):
        self.items = []
        self.ntok = 0
    def __call__(self, text):
        for line in text.split("\n"):
            line = line.strip()
            if not line or line.startswith(";"): continue
            self.items.append(Ins(line))
        return self.items[-1]
    def emit(self, text): return self(text)
    def mark(self):
        self.ntok += 1
        self.items.append(("mark", self.ntok)); return self.ntok
    def wait_vm(self, tok): self.items.append(("waitvm", tok))
    def wait_lgkm(self, tok): self.items.append(("waitlgkm", tok))
    def wait_all_lgkm(self): self("s_waitcnt lgkmcnt(0)")

    def finalize(self, verbose=False):
        out = []
        vm = []
        lg = []
        vm_seq = 0; lg_seq = 0
        marks = {}
        nwait = 0
        def do_wait(nv, nl):
            nonlocal vm, lg, nwait
            parts = []
            if nv is not None and nv < len(vm):
                nv = min(nv, 63); parts.append(f"vmcnt({nv})"); vm = vm[len(vm) - nv:] if nv else []
            if nl is not None and nl < len(lg):
                if any(i.is_smem for _, i in lg): nl = 0
                nl = min(nl, 15); parts.append(f"lgkmcnt({nl})"); lg = lg[len(lg) - nl:] if nl else []
            if parts:
                out.append(Ins("s_waitcnt " + " ".join(parts))); nwait += 1
        for it in self.items:
            if isinstance(it, tuple):
                if it[0] == "mark": marks[it[1]] = (vm_seq, lg_seq)
                elif it[0] == "waitvm":
                    s = marks[it[1]][0]; n = sum(1 for q, _ in vm if q >= s); do_wait(n, None)
                elif it[0] == "waitlgkm":
                    s = marks[it[1]][1]; n = sum(1 for q, _ in lg if q >= s); do_wait(None, n)
                continue
            ins = it
            if ins.op == "s_waitcnt":
                txt = " ".join(ins.ops) + " " + ins.mods
                m = re.search(r"vmcnt\((\d+)\)", txt)
                if m:
                    n = int(m.group(1)); vm = vm[len(vm) - n:] if n and n < len(vm) else ([] if n == 0 else vm)
                m = re.search(r"lgkmcnt\((\d+)\)", txt)
                if m:
                    n = int(m.group(1)); lg = lg[len(lg) - n:] if n and n < len(lg) else ([] if n == 0 else lg)
                out.append(ins); continue
            touched = ins.rd | ins.wr
            nv = nl = None
            for k, (q, o) in enumerate(vm):
                if (o.wr & touched):
                    nv = len(vm) - 1 - k if nv is None else min(nv, len(vm) - 1 - k)
            for k, (q, o) in enumerate(lg):
                if (o.wr & touched):
                    nl = len(lg) - 1 - k if nl is None else min(nl, len(lg) - 1 - k)
            do_wait(nv, nl)
            if ins.is_vmem and not ins.op.startswith(("buffer_wbl2", "buffer_inv")) and len(vm) >= 63: do_wait(62, None)
            out.append(ins)
            if ins.is_vmem:
                vm.append((vm_seq, ins)); vm_seq += 1
            if ins.is_ds or ins.is_smem:
                lg.append((lg_seq, ins)); lg_seq += 1
        res = []
        nnop = 0
        for ins in out:
            need = 0
            dist = 0
            for prev in reversed(res):
                if dist >= 20: break
                req = 0
                pv = {r for r in prev.wr if r[0] in "va"}
                ps = {r for r in prev.wr if r[0] == "s"}
                if prev.is_mfma:
                    P = prev.passes
                    if ins.is_mfma:
                        if pv & (ins.srcA | ins.srcB): req = max(req, {4: 8, 8: 12}[P])
                        if pv & ins.srcC and ins.srcC != prev.dst: req = max(req, {4: 6, 8: 10}[P])
                        if pv & ins.dst and not (ins.srcC == prev.dst and ins.dst == prev.dst) and not (pv & ins.srcC): req = max(req, {4: 8, 8: 12}[P])
                    elif pv & (ins.rd | ins.wr): req = max(req, {4: 8, 8: 12}[P])
                    if ins.is_valu and (prev.srcC & ins.wr): req = max(req, {4: 3, 8: 7}[P])
                if prev.is_valu:
                    if ins.is_mfma and pv & ins.rd: req = max(req, 2)
                    if ins.is_mfma and ("s", "exec") in prev.wr: req = max(req, 4)
                    if ins.is_dpp and pv & ins.rd: req = max(req, 2)
                    if ins.op.startswith("v_permlane") and pv & ins.rd: req = max(req, 2)
                    if ins.op.startswith(("v_readlane", "v_readfirstlane")) and pv & ins.rd: req = max(req, 1)
                    if prev.is_trans and ins.is_valu and not ins.is_trans and pv & ins.rd: req = max(req, 1)
                    if prev.is_trans and (ins.is_vmem or ins.is_ds) and pv & ins.rd: req = max(req, 1)
                    if ps & ins.rd:
                        if ins.is_vmem: req = max(req, 5)
                        elif ins.op.startswith(("v_readlane", "v_writelane")): req = max(req, 4)
                        elif ins.is_valu: req = max(req, 2)
                        elif ins.is_salu or ins.is_smem: req = max(req, 1)
                    if prev.op.startswith("v_dot") and pv & (ins.rd | ins.wr) and not (ins.op == prev.op): req = max(req, 3)
                    if ("op_sel" in prev.mods and not prev.op.startswith("v_pk")) and ins.is_valu and pv & (ins.rd | ins.wr): req = max(req, 1)
                if prev.is_salu:
                    if ("s", "m0") in prev.wr and ins.is_ldsdma: req = max(req, 1)
                    if ("s", "exec") in prev.wr and ins.is_dpp: req = max(req, 0)
                if (prev.is_store or (prev.is_ds and prev.op.startswith("ds_write"))) and ("x4" in prev.op or "x3" in prev.op or "b128" in prev.op):
                    dv = {r for r in prev.rd if r[0] in "va"}
                    if dv & ins.wr: req = max(req, 2)
                need = max(need, req - dist)
                dist += prev.slots()
            while need > 0:
                n = min(need, 16)
                res.append(Ins(f"s_nop {n-1}")); need -= n; nnop += 1
            res.append(ins)
        if verbose: print(f"; waits inserted {nwait}, nops inserted {nnop}, total {len(res)}")
        return [i.text for i in res]

def interleave(main, fill, per):
    out = []; k = 0
    for m in main:
        out.append(m)
        if isinstance(m, str) and m.strip().startswith("v_mfma"):
            for _ in range(per):
                if k < len(fill): out.append(fill[k]); k += 1
    return out, fill[k:]
```

```python
import sys
from asmlib import *

NAME = "gated_mix__ssm_conv_s4d__glu_gated_swiglu__prompt"
H_OFF, W2T_OFF, U4T_OFF, A2_OFF, G_OFF, WS_USED = 0, 0x700000, 0x900000, 0xB00000, 0xD00000, 0xE00000
XR, XSLOT = 0, 16384
WR, WSLOT, W3OFF = 49152, 28928, 14464
KS, KSW = 107008, 8704
KB, KBC = 146304, 4160
UB, UBC = 146304 + 8320, 4608
EX = 114688
TIN = 2 * XSLOT
TOUT = TIN + 8192
W2S = 65536
LOG2E = 0x3fb8aa3b
INV2PI = 0x3e22f983

def prologue(p, need):
    p("s_cmp_ge_u32 s2, 256")
    p("s_cbranch_scc1 L_end_%s" % need)
    p("""s_load_dwordx16 s[36:51], s[0:1], 0
         s_load_dwordx8 s[52:59], s[0:1], 64
         s_load_dwordx4 s[60:63], s[0:1], 96
         s_load_dwordx2 s[64:65], s[0:1], 112
         v_lshrrev_b32 v2, 6, v0
         v_and_b32 v1, 63, v0
         v_readfirstlane_b32 s24, v2
         s_waitcnt lgkmcnt(0)
         s_mov_b32 s4, s36
         s_mov_b32 s5, s37
         s_mov_b32 s6, 0x200000
         s_mov_b32 s7, 0x20000
         s_mov_b32 s12, s64
         s_mov_b32 s13, s65
         s_mov_b32 s14, %d
         s_mov_b32 s15, 0x20000""" % WS_USED)

def lane_fields(p):
    p("""v_lshrrev_b32 v3, 4, v1
         v_bfe_u32 v4, v1, 2, 2
         v_and_b32 v5, 3, v1
         v_lshrrev_b32 v6, 3, v1
         v_and_b32 v7, 7, v1
         v_and_b32 v8, 31, v1
         v_lshrrev_b32 v9, 5, v1""")

def kernel_p1():
    p = Prog()
    prologue(p, "p1")
    lane_fields(p)
    p("""s_mov_b32 s16, s56
         s_mov_b32 s17, s57
         s_mov_b32 s18, %d
         s_mov_b32 s19, 0x20000""" % (1792 * 1024))
    p("""v_lshlrev_b32 v10, 10, v6
         v_lshl_add_u32 v10, v7, 4, v10""")
    p("""s_lshr_b32 s25, s2, 3
         s_and_b32 s26, s2, 7
         s_lshl_b32 s27, s25, 16
         s_lshl_b32 s28, s24, 14
         s_add_u32 s27, s27, s28
         s_lshl_b32 s28, s26, 7
         s_add_u32 s27, s27, s28
         s_lshl_b32 s28, s24, 11
         s_add_u32 s29, s28, %d
         s_mov_b32 m0, s29
         s_add_u32 s30, s27, %d""" % (TIN, 8192 - 1024))
    p("buffer_load_dwordx4 v10, s[4:7], s27 offen lds")
    p("buffer_load_dwordx4 v10, s[4:7], s30 offen offset:1024 lds")
    p("""s_lshl_b32 s31, s2, 2
         s_add_u32 s31, s31, s24
         s_sub_u32 s32, s31, 128
         s_cmp_lt_u32 s31, 896
         s_cselect_b32 s31, s31, s32
         s_and_b32 s32, s31, 7
         s_lshr_b32 s33, s31, 3
         s_lshl_b32 s34, s33, 14
         s_lshl_b32 s35, s32, 7
         s_add_u32 s34, s34, s35
         s_add_u32 s35, s34, %d
         s_add_u32 s29, s28, %d
         s_mov_b32 m0, s29""" % (8192 - 1024, W2S))
    p("buffer_load_dwordx4 v10, s[16:19], s34 offen lds")
    p("buffer_load_dwordx4 v10, s[16:19], s35 offen offset:1024 lds")
    tk = p.mark()
    p("""s_lshl_b32 s66, s2, 3
         s_lshl_b32 s67, s24, 1
         s_add_u32 s66, s66, s67
         s_lshl_b32 s67, s66, 10
         v_lshlrev_b32 v11, 4, v1""")
    p("buffer_load_dwordx4 v[20:23], v11, s[4:7], s67 offen")
    p("buffer_load_dwordx4 v[24:27], v11, s[4:7], s67 offen offset:1024")
    p("global_load_dwordx4 v[28:31], v11, s[58:59]")
    p("""v_lshlrev_b32 v12, 2, v4
         v_add_u32 v12, v12, v3
         v_lshlrev_b32 v12, 7, v12
         v_lshl_add_u32 v12, v5, 3, v12
         s_lshl_b32 s68, s24, 5
         s_add_u32 s68, s68, %d
         v_add_u32 v12, s68, v12""" % TIN)
    p("""s_mul_i32 s68, s24, 2304
         s_add_u32 s68, s68, %d
         v_and_b32 v13, 15, v1
         v_mul_u32_u24 v13, 144, v13
         v_lshl_add_u32 v13, v3, 4, v13
         v_add_u32 v13, s68, v13
         v_mul_u32_u24 v14, 144, v6
         v_lshl_add_u32 v14, v7, 4, v14
         v_add_u32 v14, s68, v14""" % TOUT)
    p("""v_and_b32 v15, 1, v3
         v_lshl_add_u32 v15, v15, 2, v5
         v_lshrrev_b32 v16, 1, v15
         v_and_b32 v15, 1, v15
         v_lshlrev_b32 v15, 5, v15
         v_lshl_add_u32 v15, v16, 3, v15
         v_lshl_add_u32 v16, v9, 3, v4
         v_lshl_add_u32 v15, v16, 7, v15
         v_add_u32 v15, s29, v15""")
    p.wait_vm(tk)
    p("s_barrier")
    for blk in range(2):
        for h in range(2):
            r = 32 + blk * 4 + h * 2
            p(f"ds_read_b64_tr_b16 v[{r}:{r+1}], v12 offset:{(32*blk + 16*h) * 128}")
    for t in range(2):
        for h in range(2):
            r = 40 + t * 4 + h * 2
            p(f"ds_read_b64_tr_b16 v[{r}:{r+1}], v15 offset:{4*h*128 + 64*t}")
    for blk in range(2):
        p(f"ds_write_b128 v13, v[{32+blk*4}:{35+blk*4}] offset:{64*blk}")
    p("""s_mul_i32 s34, s32, 112
         s_add_u32 s34, s34, s33
         s_lshl_b32 s34, s34, 11
         s_add_u32 s34, s34, %d""" % W2T_OFF)
    for t in range(2):
        p(f"buffer_store_dwordx4 v[{40+4*t}:{43+4*t}], v11, s[12:15], s34 offen offset:{1024*t}")
    p("s_waitcnt lgkmcnt(0)")
    for j in range(2):
        p(f"ds_read_b128 v[{48+4*j}:{51+4*j}], v14 offset:{8*144*j}")
    p("""v_lshlrev_b32 v17, 12, v6
         v_lshl_add_u32 v17, v7, 4, v17
         s_lshl_b32 s34, s26, 18
         s_lshl_b32 s35, s24, 16
         s_add_u32 s34, s34, s35
         s_lshl_b32 s35, s25, 7
         s_add_u32 s34, s34, s35
         s_add_u32 s34, s34, %d
         s_add_u32 s35, s34, 32768""" % U4T_OFF)
    p("buffer_store_dwordx4 v[48:51], v17, s[12:15], s34 offen")
    p("buffer_store_dwordx4 v[52:55], v17, s[12:15], s35 offen")
    p("v_mov_b32 v56, 0\nv_mov_b32 v57, 0")
    for i in range(4):
        p(f"v_dot2_f32_bf16 v56, v{20+i}, v{28+i}, v56")
        p(f"v_dot2_f32_bf16 v57, v{24+i}, v{28+i}, v57")
    for sh in ("row_shr:1", "row_shr:2", "row_shr:4", "row_shr:8"):
        for r in (56, 57):
            p(f"v_add_f32_dpp v{r}, v{r}, v{r} {sh} row_mask:0xf bank_mask:0xf bound_ctrl:0")
    for r in (56, 57): p(f"v_add_f32_dpp v{r}, v{r}, v{r} row_bcast:15 row_mask:0xa bank_mask:0xf")
    for r in (56, 57): p(f"v_add_f32_dpp v{r}, v{r}, v{r} row_bcast:31 row_mask:0xc bank_mask:0xf")
    p("""v_cvt_pk_bf16_f32 v58, v56, v57
         v_lshlrev_b32 v56, 16, v58
         v_and_b32 v57, 0xffff0000, v58
         v_mul_f32 v56, 0xbfb8aa3b, v56
         v_mul_f32 v57, 0xbfb8aa3b, v57
         v_exp_f32 v56, v56
         v_exp_f32 v57, v57
         v_add_f32 v56, 1.0, v56
         v_add_f32 v57, 1.0, v57
         v_rcp_f32 v56, v56
         v_rcp_f32 v57, v57
         v_cvt_pk_bf16_f32 v58, v56, v57
         v_lshlrev_b32 v56, 16, v58
         v_and_b32 v57, 0xffff0000, v58
         s_lshl_b32 s66, s66, 2
         s_add_u32 s66, s66, %d
         v_mov_b32 v59, 0
         s_mov_b32 exec_lo, 0
         s_mov_b32 exec_hi, 0x80000000""" % G_OFF)
    p("buffer_store_dwordx2 v[56:57], v59, s[12:15], s66 offen")
    p("s_waitcnt vmcnt(0)")
    p("L_end_p1:")
    p("s_endpgm")
    return p.finalize(True)

ACC1 = 128
WF = [64, 96]
XF = [92, 124]
V_WOFF = 16
V_XOFF = 24
V_XRD = 28
V_WRD = 32
V_KF = 35
V_UF = 36
V_L16 = 37
A_KF, A_UF = 112, 176

def cmul(d, a, b):
    return [f"v_pk_mul_f32 v[{d}:{d+1}], v[{a}:{a+1}], v[{b}:{b+1}] op_sel:[0,0] op_sel_hi:[1,0]",
            f"v_pk_fma_f32 v[{d}:{d+1}], v[{a}:{a+1}], v[{b}:{b+1}], v[{d}:{d+1}] op_sel:[1,1,0] op_sel_hi:[0,1,1] neg_lo:[1,0,0]"]

def dma_stage(st, do_x=True, do_w=True):
    slot = st % 3
    o = []
    if do_x:
        o += [f"s_add_u32 m0, s70, {slot * XSLOT}", f"s_movk_i32 s73, {st * 128}"]
        for j in range(4):
            o.append(f"buffer_load_dwordx4 v{V_XOFF+j}, s[4:7], s73 offen offset:{1024*j} lds")
    if do_w:
        o += [f"s_add_u32 m0, s71, {slot * WSLOT}", f"s_add_u32 s74, s72, {st * 64 * 3584}"]
        for j in range(7):
            if j == 4: o.append(f"s_add_u32 m0, s71, {slot * WSLOT + 4096}")
            o.append(f"buffer_load_dwordx4 v{V_WOFF+j}, s[8:11], s74 offen offset:{1024*(j%4)} lds")
    return o

def frag_reads(q):
    st, s = q >> 2, q & 3
    slot = st % 3
    b = q & 1
    o = [f"ds_read_b128 v[{XF[b]}:{XF[b]+3}], v{V_XRD+s} offset:{slot * XSLOT}"]
    for t in range(7):
        for h in range(2):
            r = WF[b] + 4 * t + 2 * h
            o.append(f"ds_read_b64_tr_b16 v[{r}:{r+1}], v{V_WRD+slot} offset:{(16*s + 4*h) * 224 + 32*t}")
    return o

def kernel_main():
    p = Prog()
    prologue(p, "main")
    lane_fields(p)
    p("""s_and_b32 s25, s2, 1
         s_lshl_b32 s25, s25, 3
         s_bfe_u32 s26, s2, 0x30003
         s_add_u32 s25, s25, s26
         s_bfe_u32 s26, s2, 0x20001
         s_lshl_b32 s26, s26, 2
         s_lshr_b32 s27, s2, 6
         s_add_u32 s26, s26, s27
         s_and_b32 s28, s24, 1
         s_lshr_b32 s29, s24, 1""")
    p("""s_lshl_b32 s30, s2, 1
         s_add_u32 s30, s30, s29
         s_lshl_b32 s31, s30, 8
         s_lshl_b32 s32, s28, 7
         s_add_u32 s31, s31, s32
         v_lshl_add_u32 v10, v1, 1, s31
         v_mov_b32 v40, 0
         v_mov_b32 v41, 0
         v_mov_b32 v42, 0
         v_mov_b32 v43, 0
         s_lshl_b32 s33, s2, 2""")
    p("""global_load_short_d16_hi v40, v10, s[38:39]
         global_load_short_d16_hi v41, v10, s[40:41]
         global_load_short_d16_hi v42, v10, s[42:43]
         global_load_short_d16_hi v43, v10, s[44:45]
         s_load_dword s34, s[46:47], s33
         s_load_dword s35, s[48:49], s33""")
    p("""s_cmp_eq_u32 s28, 0
         s_cselect_b32 s8, s52, s54
         s_cselect_b32 s9, s53, s55
         s_mov_b32 s10, %d
         s_mov_b32 s11, 0x20000""" % (512 * 3584))
    p("s_movk_i32 s66, 4682")
    for j in range(7):
        p(f"""v_add_u32 v11, {64*j}, v1
              v_mul_u32_u24 v12, s66, v11
              v_lshrrev_b32 v12, 16, v12
              v_mul_u32_u24 v13, 14, v12
              v_sub_u32 v13, v11, v13
              v_mul_u32_u24 v12, 0xe00, v12
              v_lshl_add_u32 v{V_WOFF+j}, v13, 4, v12""")
        if j % 4: p(f"v_subrev_u32 v{V_WOFF+j}, {1024*(j%4)}, v{V_WOFF+j}")
    p("""s_lshl_b32 s67, s25, 7
         s_lshl_b32 s68, s24, 5
         s_add_u32 s67, s67, s68
         s_lshl_b32 s67, s67, 10""")
    for j in range(4):
        p(f"""v_add_u32 v11, {8*j}, v6
              v_bfe_u32 v12, v11, 1, 3
              v_xor_b32 v12, v12, v7
              v_lshlrev_b32 v11, 10, v11
              v_lshl_add_u32 v11, v12, 4, v11
              v_add_u32 v{V_XOFF+j}, s67, v11""")
        if j: p(f"v_subrev_u32 v{V_XOFF+j}, {1024*j}, v{V_XOFF+j}")
    p("""s_lshl_b32 s70, s24, 12
         s_mul_i32 s71, s28, %d
         s_mul_i32 s68, s29, 7168
         s_add_u32 s71, s71, s68
         s_add_u32 s71, s71, %d
         s_mul_i32 s72, s29, %d
         s_mul_i32 s68, s26, 224
         s_add_u32 s72, s72, s68""" % (W3OFF, WR, 32 * 3584))
    for i in dma_stage(0): p(i)
    tk_st = {0: p.mark()}
    for i in dma_stage(1): p(i)
    tk_st[1] = p.mark()
    for i in dma_stage(2, do_w=False): p(i)
    p("""v_lshlrev_b32 v%d, 4, v1
         s_lshl_b32 s75, s30, 12
         s_lshl_b32 s68, s28, 11
         s_add_u32 s75, s75, s68
         s_add_u32 s75, s75, %d
         s_mul_i32 s76, s29, %d
         s_add_u32 s76, s76, %d
         s_add_u32 s77, s76, s68
         s_add_u32 m0, s77, 512""" % (V_L16, U4T_OFF, UBC, UB))
    p(f"buffer_load_dwordx4 v{V_L16}, s[12:15], s75 offen lds")
    p(f"buffer_load_dwordx4 v{V_L16}, s[12:15], s75 offen offset:1024 lds")
    p("""v_bfe_u32 v11, v8, 1, 3
         v_xor_b32 v11, v11, v9
         v_lshlrev_b32 v11, 4, v11
         v_lshl_add_u32 v11, v8, 7, v11
         v_add_u32 v%d, s70, v11""" % V_XRD)
    for s in range(1, 4): p(f"v_xor_b32 v{V_XRD+s}, {32*s}, v{V_XRD}")
    p("""v_and_b32 v11, 1, v3
         v_bfe_u32 v12, v5, 1, 1
         v_and_b32 v13, 1, v5
         v_lshl_add_u32 v13, v13, 1, v11
         v_mul_u32_u24 v12, %d, v12
         v_lshl_add_u32 v12, v13, 3, v12
         v_lshl_add_u32 v13, v9, 3, v4
         v_mul_u32_u24 v13, 224, v13
         v_add_u32 v12, v12, v13""" % W3OFF)
    for s in range(3): p(f"v_add_u32 v{V_WRD+s}, {WR + s*WSLOT}, v12")
    p("""s_mul_i32 s78, s29, %d
         s_add_u32 s78, s78, %d
         v_lshl_add_u32 v12, v11, 2, v5
         v_sub_u32 v12, v12, v4
         v_lshlrev_b32 v13, 3, v9
         v_sub_u32 v12, v12, v13
         v_lshlrev_b32 v12, 3, v12
         s_lshl_b32 s68, s28, 7
         s_add_u32 s68, s68, s78
         s_add_u32 s68, s68, 96
         v_add_u32 v%d, s68, v12""" % (KBC, KB, V_KF))
    p("""v_lshlrev_b32 v12, 4, v8
         v_lshl_add_u32 v12, v9, 6, v12
         s_lshl_b32 s68, s28, 7
         s_sub_u32 s68, s76, s68
         s_add_u32 s68, s68, 192
         v_add_u32 v%d, s68, v12""" % V_UF)
    p("""v_mov_b32 v44, 0
         v_mov_b32 v45, 0
         v_lshlrev_b32 v12, 3, v1
         v_add_u32 v12, s76, v12
         ds_write_b64 v12, v[44:45]
         v_and_b32 v12, 15, v1
         v_lshlrev_b32 v12, 2, v12
         v_add_u32 v12, s78, v12
         ds_write_b32 v12, v44""")
    p("""s_mul_i32 s79, s24, %d
         s_add_u32 s79, s79, %d
         v_lshl_add_u32 v14, v1, 2, s79
         v_mul_u32_u24 v15, 272, v8
         v_lshl_add_u32 v15, v9, 4, v15
         v_add_u32 v15, s79, v15
         s_waitcnt lgkmcnt(0)
         s_lshl_b32 s68, s29, 4
         s_lshr_b32 s34, s34, s68
         s_lshl_b32 s34, s34, 16
         s_lshr_b32 s35, s35, s68
         s_lshl_b32 s35, s35, 16""" % (KSW, KS))
    p(f"""v_mov_b32 v46, s34
          v_mul_f32 v46, {LOG2E:#x}, v46
          v_mul_f32 v40, {LOG2E:#x}, v40
          v_exp_f32 v46, v46
          v_exp_f32 v40, v40
          v_cvt_pk_bf16_f32 v47, v46, v40
          v_lshlrev_b32 v46, 16, v47
          v_and_b32 v40, 0xffff0000, v47
          v_mul_f32 v40, v40, v46
          v_mul_f32 v41, v41, v46
          v_mul_f32 v40, 0xbfb8aa3b, v40
          v_mul_f32 v41, {INV2PI:#x}, v41
          v_add_f32 v46, v46, v46
          v_mul_f32 v48, v42, v46
          v_mul_f32 v49, v43, v46""")
    E1, E8, E256 = 50, 52, 54
    for (e, mul) in ((E8, 0x41000000), (E1, None), (E256, 0x43800000)):
        if mul:
            p(f"v_mul_f32 v56, {mul:#x}, v40\nv_mul_f32 v57, {mul:#x}, v41")
            a, b = 56, 57
        else:
            a, b = 40, 41
        p(f"""v_exp_f32 v56, v{a}
              v_fract_f32 v57, v{b}
              v_cos_f32 v58, v57
              v_sin_f32 v59, v57
              v_mul_f32 v{e}, v56, v58
              v_mul_f32 v{e+1}, v56, v59""")
    p("v_mov_b32 v60, 0x3f80\nds_write_b32 v14, v60")
    p(f"v_cvt_pk_bf16_f32 v61, v{E8}, v{E8+1}\nds_write_b32 v14, v61 offset:272")
    cur = E8
    ping = [128, 130]
    for j in range(2, 32):
        d = ping[j & 1]
        for i in cmul(d, cur, E8): p(i)
        p(f"v_cvt_pk_bf16_f32 v{60 + (j&1)}, v{d}, v{d+1}")
        p(f"ds_write_b32 v14, v{60 + (j&1)} offset:{272*j}")
        cur = d
    p("s_waitcnt lgkmcnt(0)")
    YF, XFR = 160, 192
    for s in range(8): p(f"ds_read_b128 v[{YF+4*s}:{YF+4*s+3}], v15 offset:{32*s}")
    rows = {}
    lists = [[0,1,2,3, 256,258,260,None, 512,516,520,None, 1024,1032,1280,1288],
             [4,5,6,7, 260,262,264,None, 768,772,776,None, 1536,1544,1792,1800]]
    for hh in range(2):
        for k, pos in enumerate(lists[hh]):
            if pos is not None: rows.setdefault(pos, []).append(8 * (k >> 2) + 4 * hh + (k & 3))
    xr = {0: 48}
    nxt = 132
    seq = []
    for pos in range(1, 9): seq.append((pos, pos - 1, E1))
    for base in range(256, 2048, 256):
        offs = (0, 2, 4, 6, 8) if base == 256 else ((0, 4, 8) if base < 1024 else (0, 8))
        for o in offs: seq.append((base + o, base - 256 + o, E256))
    tk_y = p.mark()
    pend = []
    def put(pos):
        nonlocal pend
        if pos in rows:
            t = 60 + (len(pend) & 1); pend.append(pos)
            p(f"v_cvt_pk_bf16_f32 v{t}, v{xr[pos]}, -v{xr[pos]+1}")
            for m in rows[pos]: p(f"ds_write_b32 v14, v{t} offset:{272*m}")
    free = list(range(132, 160, 2)) + list(range(224, 240, 2))
    first = True
    for (pos, src, e) in seq:
        d = free.pop(0); xr[pos] = d
        for i in cmul(d, xr[src], e): p(i)
        if first:
            p.wait_lgkm(tk_y); put(0); first = False
        put(pos)
        if pos >= 256 and src != 0: free.append(xr[src])
    p("s_waitcnt lgkmcnt(0)")
    for s in range(8): p(f"ds_read_b128 v[{XFR+4*s}:{XFR+4*s+3}], v15 offset:{32*s}")
    KD = 128
    for s in range(8):
        c = "0" if s == 0 else f"v[{KD}:{KD+15}]"
        p(f"v_mfma_f32_32x32x16_bf16 v[{KD}:{KD+15}], v[{XFR+4*s}:{XFR+4*s+3}], v[{YF+4*s}:{YF+4*s+3}], {c}")
    p("""v_lshl_add_u32 v14, v1, 4, s79
         s_xor_b32 s68, s24, 1
         s_mul_i32 s68, s68, %d
         s_add_u32 s68, s68, %d
         v_lshl_add_u32 v15, v1, 4, s68""" % (KSW, KS))
    for i in range(4): p(f"ds_write_b128 v14, v[{KD+4*i}:{KD+4*i+3}] offset:{1024*i}")
    p("s_waitcnt lgkmcnt(0)\ns_barrier")
    for i in range(4): p(f"ds_read_b128 v[{144+4*i}:{144+4*i+3}], v15 offset:{1024*i}")
    p("""v_lshl_add_u32 v12, v8, 4, s78
         v_lshl_add_u32 v13, v9, 3, v12
         v_lshl_add_u32 v14, v9, 9, v12
         v_lshl_add_u32 v15, v9, 10, v12
         v_cmp_eq_u32 vcc, 0, v1
         v_mov_b32 v46, s35
         v_cndmask_b32 v46, 0, v46, vcc
         v_and_b32 v47, 1, v1
         v_cmp_eq_u32 vcc, 1, v47""")
    for i in range(16):
        if i in (7, 11): continue
        p(f"v_add_f32 v{KD+i}, v{KD+i}, v{144+i}")
    k = lambda i: f"v{KD+i}"
    p(f"""v_add_f32 {k(0)}, {k(0)}, v46
          v_cvt_pk_bf16_f32 v48, {k(0)}, {k(1)}
          v_cvt_pk_bf16_f32 v49, {k(2)}, {k(3)}
          ds_write_b64 v13, v[48:49] offset:64
          v_cvt_pk_bf16_f32 v50, {k(4)}, {k(4)}
          v_cvt_pk_bf16_f32 v51, {k(5)}, {k(6)}
          ds_write_b64 v13, v[50:51] offset:{64+512}
          v_cvt_pk_bf16_f32 v52, {k(8)}, {k(8)}
          v_cvt_pk_bf16_f32 v53, {k(8)}, {k(9)}
          v_cvt_pk_bf16_f32 v54, {k(9)}, {k(9)}
          v_cvt_pk_bf16_f32 v55, {k(10)}, {k(10)}
          ds_write_b128 v14, v[52:55] offset:{64+1024}""")
    for b in range(2):
        v, vn = k(12 + 2*b), k(13 + 2*b); r = 56 + 4*b
        p(f"""v_cndmask_b32 v47, {v}, {vn}, vcc
              v_cvt_pk_bf16_f32 v{r}, {v}, {v}
              v_cvt_pk_bf16_f32 v{r+1}, {v}, {v}
              v_cvt_pk_bf16_f32 v{r+2}, v47, {vn}
              v_cvt_pk_bf16_f32 v{r+3}, {vn}, {vn}
              ds_write_b128 v15, v[{r}:{r+3}] offset:{64+2048+512*b}""")
    p("s_waitcnt lgkmcnt(0)")
    p.wait_vm(tk_st[0])
    p("s_barrier")
    for i in dma_stage(2, do_x=False): p(i)
    tk_st[2] = p.mark()
    for i in frag_reads(0): p(i)
    pending_dma = []
    for q in range(32):
        st, s = q >> 2, q & 3
        b = q & 1
        nxt_reads = frag_reads(q + 1) if q < 31 else []
        for t in range(7):
            a = ACC1 + 16 * t
            c = "0" if q == 0 else f"v[{a}:{a+15}]"
            p(f"v_mfma_f32_32x32x16_bf16 v[{a}:{a+15}], v[{WF[b]+4*t}:{WF[b]+4*t+3}], v[{XF[b]}:{XF[b]+3}], {c}")
            if s == 3 and q < 31:
                if t == 1:
                    for i in pending_dma: p(i)
                    pending_dma = []
                    if st + 2 <= 7 and (st + 2) not in tk_st: tk_st[st + 2] = p.mark()
                    p("s_waitcnt lgkmcnt(0)")
                    p.wait_vm(tk_st[st + 1])
                    p("s_barrier")
                    if st + 3 <= 7: pending_dma = dma_stage(st + 3)
                if t >= 1:
                    for _ in range(3):
                        if nxt_reads: p(nxt_reads.pop(0))
            else:
                for _ in range(3 if t == 0 else 2):
                    if nxt_reads: p(nxt_reads.pop(0))
                if pending_dma and s < 3:
                    p(pending_dma.pop(0))
        assert not nxt_reads
    for s in range(16):
        p(f"ds_read_b64_tr_b16 a[{A_KF+4*s}:{A_KF+4*s+1}], v{V_KF} offset:{256*s + 32}")
        p(f"ds_read_b64_tr_b16 a[{A_KF+4*s+2}:{A_KF+4*s+3}], v{V_KF} offset:{256*s}")
        p(f"ds_read_b128 a[{A_UF+4*s}:{A_UF+4*s+3}], v{V_UF} offset:{256*s}")
    p("s_waitcnt lgkmcnt(0)\ns_barrier")
    p("""s_lshl_b32 s66, s25, 2
         s_add_u32 s66, s66, s24
         s_mul_i32 s66, s66, 112
         s_mul_i32 s67, s26, 7
         s_add_u32 s66, s66, s67
         s_lshl_b32 s66, s66, 10
         s_add_u32 s67, s66, 4096""")
    for t in range(7):
        a = ACC1 + 16 * t
        T = 48 + 8 * (t & 1)
        for half in range(2):
            g0, u0 = a + 8 * half, a + 8 * half + 4
            for i in range(4): p(f"v_mul_f32 v{T+i}, 0xbfb8aa3b, v{g0+i}")
            for i in range(4): p(f"v_exp_f32 v{T+i}, v{T+i}")
            for i in range(4): p(f"v_mul_f32 v{g0+i}, v{g0+i}, v{u0+i}")
            for i in range(4): p(f"v_add_f32 v{T+i}, 1.0, v{T+i}")
            for i in range(4): p(f"v_rcp_f32 v{T+i}, v{T+i}")
            for i in range(4): p(f"v_mul_f32 v{g0+i}, v{g0+i}, v{T+i}")
            p(f"v_cvt_pk_bf16_f32 v{T+4+2*half}, v{g0}, v{g0+1}")
            p(f"v_cvt_pk_bf16_f32 v{T+5+2*half}, v{g0+2}, v{g0+3}")
        p(f"buffer_store_dwordx4 v[{T+4}:{T+7}], v{V_L16}, s[12:15], {'s66' if t < 4 else 's67'} offen offset:{1024*(t%4)}")
    CA = [64, 80, 96]
    p("""s_lshl_b32 s68, s24, 13
         s_add_u32 s68, s68, %d
         v_add_u32 v14, s68, v%d
         v_mov_b32 v112, 0
         v_mov_b32 v113, 0
         v_mov_b32 v114, 0""" % (EX, V_L16))
    prevP = [112, 113, 114]
    tmp = [[116, 117], [118, 119]]
    for tau in range(8):
        a = CA[tau % 3]
        for sp in range(2 * tau + 2):
            v2 = 2 * tau - sp + 1
            c = "0" if sp == 0 else f"v[{a}:{a+15}]"
            p(f"v_mfma_f32_32x32x16_bf16 v[{a}:{a+15}], a[{A_UF+4*v2}:{A_UF+4*v2+3}], a[{A_KF+4*sp}:{A_KF+4*sp+3}], {c}")
        Y = 120 + 4 * (tau & 1)
        for qd in range(4):
            z = a + 4 * qd
            P2, P1 = tmp[qd & 1]
            dm = "row_mask:0xf bank_mask:0xf"
            p(f"v_add_f32_dpp v{P2}, v{prevP[0]}, v{z+2} wave_ror:1 {dm}")
            p(f"v_add_f32_dpp v{P2}, v{z+3}, v{z+2} wave_shr:1 {dm}")
            p(f"v_add_f32_dpp v{P1}, v{prevP[1]}, v{z+1} wave_ror:1 {dm}")
            p(f"v_add_f32_dpp v{P1}, v{P2}, v{z+1} wave_shr:1 {dm}")
            p(f"v_add_f32_dpp v{Y+qd}, v{prevP[2]}, v{z} wave_ror:1 {dm}")
            p(f"v_add_f32_dpp v{Y+qd}, v{P1}, v{z} wave_shr:1 {dm}")
            prevP = [z + 3, P2, P1]
        p(f"ds_write_b128 v14, v[{Y}:{Y+3}] offset:{1024*tau}")
    p("s_waitcnt lgkmcnt(0)\ns_barrier")
    p("""s_lshl_b32 s68, s24, 11
         s_add_u32 s68, s68, %d
         v_add_u32 v14, s68, v%d""" % (EX, V_L16))
    for tt in range(2):
        for src in range(4):
            r = 128 + 16 * tt + 4 * src
            p(f"ds_read_b128 v[{r}:{r+3}], v14 offset:{8192*src + 1024*tt}")
    p("""s_lshl_b32 s66, s2, 13
         s_lshl_b32 s67, s24, 11
         s_add_u32 s66, s66, s67
         s_add_u32 s66, s66, %d
         v_lshlrev_b32 v15, 2, v1""" % A2_OFF)
    for tt in range(2):
        for qd in range(4):
            r = 128 + 16 * tt + qd
            p(f"v_add_f32 v{r}, v{r}, v{r+4}\nv_add_f32 v{r+8}, v{r+8}, v{r+12}")
            p(f"v_cvt_pk_bf16_f32 v{r}, v{r}, v{r+8}")
            p(f"buffer_store_dword v{r}, v15, s[12:15], s66 offen offset:{1024*tt + 256*qd}")
    p("s_waitcnt vmcnt(0)")
    p("L_end_main:")
    p("s_endpgm")
    return p.finalize(True)

def kernel_g2():
    p = Prog()
    prologue(p, "g2")
    p("""v_and_b32 v8, 31, v1
         v_lshrrev_b32 v9, 5, v1
         v_lshlrev_b32 v10, 4, v1
         s_mov_b32 s20, s60
         s_mov_b32 s21, s61
         s_mov_b32 s22, 0x200000
         s_mov_b32 s23, 0x20000""")
    p("""s_and_b32 s25, s2, 7
         s_lshl_b32 s25, s25, 2
         s_lshr_b32 s26, s2, 6
         s_add_u32 s25, s25, s26
         s_bfe_u32 s26, s2, 0x30003
         s_and_b32 s28, s24, 1
         s_lshr_b32 s29, s24, 1""")
    p("""s_mul_i32 s30, s26, 112
         s_mul_i32 s31, s24, 28
         s_add_u32 s30, s30, s31
         s_lshl_b32 s30, s30, 11
         s_add_u32 s30, s30, %d
         s_lshl_b32 s32, s28, 10
         v_add_u32 v11, s32, v10
         v_xor_b32 v12, 1024, v11""" % W2T_OFF)
    p("""s_lshl_b32 s33, s25, 1
         s_mul_i32 s33, s33, 112
         s_add_u32 s33, s33, s31
         s_lshl_b32 s33, s33, 10
         s_mul_i32 s34, s29, %d
         s_sub_u32 s35, %d, s34
         v_add_u32 v13, s34, v10
         v_add_u32 v14, s35, v10""" % (112 * 1024, 112 * 1024))
    p("""s_lshl_b32 s66, s26, 5
         s_lshl_b32 s67, s28, 4
         s_add_u32 s66, s66, s67
         s_lshl_b32 s66, s66, 13
         s_lshl_b32 s67, s25, 6
         s_lshl_b32 s68, s29, 5
         s_add_u32 s67, s67, s68
         s_lshl_b32 s68, s67, 2
         s_add_u32 s66, s66, s68
         s_add_u32 s66, s66, %d
         s_add_u32 s68, s68, %d
         v_lshlrev_b32 v15, 2, v8
         v_lshl_add_u32 v16, v9, 16, v15""" % (A2_OFF, G_OFF))
    p("buffer_load_dword v17, v15, s[12:15], s68 offen")
    for i in range(8):
        p(f"buffer_load_dword v{24+i}, v16, s[12:15], s66 offen")
        p("s_add_u32 s66, s66, 8192")
    ACC = 64
    DEPTH = 10
    def fr(step, k): return 4 * ((step % 14) * 4 + k)
    def loads(step):
        o = []
        if step % 2 == 0 and step: o.append("s_add_u32 s30, s30, 4096")
        if step % 4 == 0 and step: o.append("s_add_u32 s33, s33, 4096")
        for k in range(2): o.append(f"buffer_load_dwordx4 a[{fr(step,k)}:{fr(step,k)+3}], v{11+k}, s[12:15], s30 offen offset:{2048*(step%2)}")
        for k in range(2): o.append(f"buffer_load_dwordx4 a[{fr(step,2+k)}:{fr(step,2+k)+3}], v{13+k}, s[12:15], s33 offen offset:{1024*(step%4)}")
        return o
    for s in range(DEPTH):
        for i in loads(s): p(i)
    for s in range(28):
        nx = loads(s + DEPTH) if s + DEPTH < 28 else []
        for t in range(2):
            for lt in range(2):
                a = ACC + 16 * (2 * lt + t)
                c = "0" if s == 0 else f"v[{a}:{a+15}]"
                p(f"v_mfma_f32_32x32x16_bf16 v[{a}:{a+15}], a[{fr(s,t)}:{fr(s,t)+3}], a[{fr(s,2+lt)}:{fr(s,2+lt)+3}], {c}")
                for _ in range(2):
                    if nx: p(nx.pop(0))
    for c in range(1, 4):
        p(f"""s_xor_b32 s69, s24, {c}
              s_mul_i32 s69, s69, 12288
              v_add_u32 v18, s69, v10""")
        for i in range(4):
            a = ACC + 16 * c + 4 * i
            p(f"ds_write_b128 v18, v[{a}:{a+3}] offset:{4096*(c-1) + 1024*i}")
    p("""s_mul_i32 s69, s24, 12288
         v_add_u32 v18, s69, v10
         s_waitcnt lgkmcnt(0)
         s_barrier""")
    for c in range(1, 4):
        for i in range(4):
            a = ACC + 16 * c + 4 * i
            p(f"ds_read_b128 v[{a}:{a+3}], v18 offset:{4096*(c-1) + 1024*i}")
    p("v_sub_f32 v19, 1.0, v17")
    for i in range(8):
        p(f"""v_lshlrev_b32 v{32+2*i}, 16, v{24+i}
              v_and_b32 v{33+2*i}, 0xffff0000, v{24+i}
              v_mul_f32 v{32+2*i}, v17, v{32+2*i}
              v_mul_f32 v{33+2*i}, v17, v{33+2*i}""")
    for i in range(16):
        p(f"""v_add_f32 v{ACC+i}, v{ACC+i}, v{ACC+16+i}
              v_add_f32 v{ACC+32+i}, v{ACC+32+i}, v{ACC+48+i}""")
    for i in range(16):
        p(f"v_add_f32 v{ACC+i}, v{ACC+i}, v{ACC+32+i}")
    for i in range(16):
        p(f"v_fma_f32 v{ACC+i}, v{ACC+i}, v19, v{32+i}")
    for i in range(8):
        p(f"v_cvt_pk_bf16_f32 v{48+i}, v{ACC+2*i}, v{ACC+2*i+1}")
    p("""s_lshl_b32 s67, s67, 10
         s_lshl_b32 s68, s26, 7
         s_add_u32 s67, s67, s68
         s_lshl_b32 s68, s28, 6
         s_add_u32 s67, s67, s68
         v_lshlrev_b32 v20, 10, v8
         v_lshl_add_u32 v20, v9, 5, v20""")
    p("buffer_store_dwordx4 v[48:51], v20, s[20:23], s67 offen")
    p("buffer_store_dwordx4 v[52:55], v20, s[20:23], s67 offen offset:16")
    p("s_waitcnt vmcnt(0)")
    p("L_end_g2:")
    p("s_endpgm")
    return p.finalize(True)

def kd(name, vg, acc):
    return f""".p2align 6
.amdhsa_kernel {name}
  .amdhsa_next_free_vgpr {vg}
  .amdhsa_next_free_sgpr 96
  .amdhsa_accum_offset {acc}
  .amdhsa_group_segment_fixed_size 0
  .amdhsa_kernarg_size 120
  .amdhsa_user_sgpr_count 2
  .amdhsa_user_sgpr_kernarg_segment_ptr 1
  .amdhsa_system_sgpr_workgroup_id_x 1
.end_amdhsa_kernel"""

hdr = open("cdna_kernels/" + NAME + ".s.ref").read().split("; Override launch")[0]
ks = [("p1_kernel", kernel_p1(), 64, 64, 81920), ("main_kernel", kernel_main(), 512, 256, 163840), ("g2_kernel", kernel_g2(), 512, 256, 65536)]
o = [hdr.rstrip()]
for n, _, _, _, lds in ks: o.append(f"; @launch kernel={n} grid=(256,1,1) block=(256,1,1) lds={lds}")
o.append('.amdgcn_target "amdgcn-amd-amdhsa--gfx950"\n.text')
for n, body, _, _, _ in ks:
    o.append(f".globl {n}\n.p2align 8\n.type {n},@function\n{n}:")
    o += [("" if l.endswith(":") else "    ") + l for l in body]
o.append('.section .rodata,"a"')
for n, _, vg, acc, _ in ks: o.append(kd(n, vg, acc))
open(sys.argv[1] if len(sys.argv) > 1 else "v1.s", "w").write("\n".join(o) + "\n")
```

```python
import re

REG_RE = re.compile(r"(?<![\w.])(-?)(?:abs\()?([vas])(?:(\d+)|\[(\d+):(\d+)\])\)?(?![\w])")

def regs_of(tok):
    tok = tok.strip()
    out = set()
    if tok in ("vcc", "vcc_lo", "vcc_hi"): return {("s", "vcc")}
    if tok in ("exec", "exec_lo", "exec_hi"): return {("s", "exec")}
    if tok == "m0": return {("s", "m0")}
    m = REG_RE.fullmatch(tok)
    if not m: return out
    c = m.group(2)
    if m.group(3) is not None: return {(c, int(m.group(3)))}
    return {(c, i) for i in range(int(m.group(4)), int(m.group(5)) + 1)}

def split_ops(s):
    ops, depth, cur = [], 0, ""
    for ch in s:
        if ch in "[(": depth += 1
        if ch in "])": depth -= 1
        if ch == "," and depth == 0: ops.append(cur.strip()); cur = ""
        else: cur += ch
    if cur.strip(): ops.append(cur.strip())
    return ops

TRANS = ("v_exp_f32", "v_log_f32", "v_rcp_f32", "v_rsq_f32", "v_sqrt_f32", "v_sin_f32", "v_cos_f32")

class Ins:
    def __init__(self, text):
        self.text = text
        t = text.split(";")[0].strip()
        parts = t.split(None, 1)
        self.op = parts[0] if parts else ""
        rest = parts[1] if len(parts) > 1 else ""
        ops = split_ops(rest)
        self.mods = ""
        if ops:
            last = ops[-1].split(None, 1)
            ops[-1] = last[0]
            if len(last) > 1: self.mods = last[1]
        self.ops = ops
        op = self.op
        self.is_mfma = op.startswith("v_mfma")
        self.is_valu = op.startswith("v_") and not self.is_mfma
        self.is_salu = op.startswith("s_") and not op.startswith(("s_load", "s_waitcnt", "s_barrier", "s_nop", "s_memtime", "s_memrealtime", "s_endpgm", "s_branch", "s_cbranch", "s_sleep", "s_setprio", "s_buffer_load", "s_atomic"))
        self.is_smem = op.startswith(("s_load", "s_memtime", "s_memrealtime", "s_buffer_load", "s_atomic"))
        self.is_ds = op.startswith("ds_")
        self.is_vmem = op.startswith(("buffer_", "global_"))
        self.is_ldsdma = self.is_vmem and (" lds" in (" " + self.mods) or "load_lds" in op)
        self.is_store = self.is_vmem and "store" in op
        self.is_trans = op.replace("_e32", "").replace("_e64", "") in TRANS
        self.is_dpp = "_dpp" in op or "wave_" in self.mods or "row_" in self.mods or "quad_perm" in self.mods
        self.is_label = op.endswith(":")
        self.is_branch = op.startswith(("s_branch", "s_cbranch"))
        R = [regs_of(o) for o in ops]
        rd, wr = set(), set()
        if self.is_label or op.startswith((".", "s_waitcnt", "s_barrier", "s_nop", "s_endpgm", "s_branch", "s_cbranch", "s_sleep", "s_setprio")) or op == "":
            pass
        elif self.is_ds:
            if op.startswith(("ds_write", "ds_add")) :
                for r in R: rd |= r
                if "addtid" in op: rd.add(("s", "m0"))
            else:
                wr |= R[0]
                for r in R[1:]: rd |= r
        elif self.is_vmem:
            if op.startswith(("buffer_wbl2", "buffer_inv")):
                pass
            elif self.is_store or self.is_ldsdma or ("atomic" in op and "sc0" not in self.mods):
                for r in R: rd |= r
                if self.is_ldsdma: rd.add(("s", "m0"))
            else:
                wr |= R[0]
                for r in R[1:]: rd |= r
                if "d16" in op or "atomic" in op: rd |= R[0]
        elif op.startswith(("s_cmp", "s_bitcmp")):
            for r in R: rd |= r
            wr.add(("s", "scc"))
        elif op.startswith("v_cmp"):
            wr |= R[0]
            for r in R[1:]: rd |= r
        elif op.startswith("v_permlane") and "swap" in op:
            rd |= R[0] | R[1]; wr |= R[0] | R[1]
        else:
            wr |= R[0]
            for r in R[1:]: rd |= r
            if op.startswith(("v_fmac", "v_dot2c", "v_pk_fmac", "v_writelane")) or self.is_dpp: rd |= R[0]
            if op.startswith(("v_add_co", "v_addc_co", "v_sub_co")): wr |= R[1]; rd -= R[1] if not op.startswith("v_addc") else set()
            if "saveexec" in op: wr.add(("s", "exec")); rd.add(("s", "exec"))
            if op.startswith("v_cndmask") and len(ops) == 3: rd.add(("s", "vcc"))
        if self.is_smem and op == 's_load_dword' and ops[0] == 's96': wr = set()
        self.rd, self.wr = rd, wr
        self.dppsrc = R[1] if (self.is_dpp and len(R) > 1) else set()
        if self.is_mfma:
            self.srcA, self.srcB, self.srcC, self.dst = R[1], R[2], R[3], R[0]
            self.passes = 8 if "32x32" in op else 4
    def slots(self):
        if self.op == "s_nop": return int(self.ops[0], 0) + 1
        if self.is_label or self.op.startswith(".") or self.op == "": return 0
        return 1

class Prog:
    def __init__(self):
        self.items = []
        self.ntok = 0
    def __call__(self, text):
        for line in text.split("\n"):
            line = line.strip()
            if not line or line.startswith(";"): continue
            self.items.append(Ins(line))
        return self.items[-1]
    def emit(self, text): return self(text)
    def mark(self):
        self.ntok += 1
        self.items.append(("mark", self.ntok)); return self.ntok
    def wait_vm(self, tok): self.items.append(("waitvm", tok))
    def wait_lgkm(self, tok): self.items.append(("waitlgkm", tok))
    def wait_all_lgkm(self): self("s_waitcnt lgkmcnt(0)")
    def touch(self, *opnds):
        r = set()
        for o in opnds: r |= regs_of(o)
        self.items.append(("touch", r))
    def add(self, item):
        if callable(item): item(self)
        else: self(item)

    def finalize(self, verbose=False):
        out = []
        vm = []
        lg = []
        vm_seq = 0; lg_seq = 0
        marks = {}
        nwait = 0
        def do_wait(nv, nl):
            nonlocal vm, lg, nwait
            parts = []
            if nv is not None and nv < len(vm):
                nv = min(nv, 63); parts.append(f"vmcnt({nv})"); vm = vm[len(vm) - nv:] if nv else []
            if nl is not None and nl < len(lg):
                if any(i.is_smem for _, i in lg): nl = 0
                nl = min(nl, 15); parts.append(f"lgkmcnt({nl})"); lg = lg[len(lg) - nl:] if nl else []
            if parts:
                out.append(Ins("s_waitcnt " + " ".join(parts))); nwait += 1
        for it in self.items:
            if isinstance(it, tuple):
                if it[0] == "mark": marks[it[1]] = (vm_seq, lg_seq)
                elif it[0] == "waitvm":
                    s = marks[it[1]][0]; n = sum(1 for q, _ in vm if q >= s); do_wait(n, None)
                elif it[0] == "waitlgkm":
                    s = marks[it[1]][1]; n = sum(1 for q, _ in lg if q >= s); do_wait(None, n)
                elif it[0] == "touch":
                    nv = nl = None
                    for k, (q, o) in enumerate(vm):
                        if o.wr & it[1]: nv = len(vm) - 1 - k
                    for k, (q, o) in enumerate(lg):
                        if o.wr & it[1]: nl = len(lg) - 1 - k
                    do_wait(nv, nl)
                continue
            ins = it
            if ins.op == "s_waitcnt":
                txt = " ".join(ins.ops) + " " + ins.mods
                m = re.search(r"vmcnt\((\d+)\)", txt)
                if m:
                    n = int(m.group(1)); vm = vm[len(vm) - n:] if n and n < len(vm) else ([] if n == 0 else vm)
                m = re.search(r"lgkmcnt\((\d+)\)", txt)
                if m:
                    n = int(m.group(1)); lg = lg[len(lg) - n:] if n and n < len(lg) else ([] if n == 0 else lg)
                out.append(ins); continue
            touched = ins.rd | ins.wr
            nv = nl = None
            for k, (q, o) in enumerate(vm):
                if (o.wr & touched):
                    nv = len(vm) - 1 - k if nv is None else min(nv, len(vm) - 1 - k)
            for k, (q, o) in enumerate(lg):
                if (o.wr & touched):
                    nl = len(lg) - 1 - k if nl is None else min(nl, len(lg) - 1 - k)
            do_wait(nv, nl)
            if ins.is_vmem and not ins.op.startswith(("buffer_wbl2", "buffer_inv")) and len(vm) >= 63: do_wait(62, None)
            out.append(ins)
            if ins.is_vmem:
                vm.append((vm_seq, ins)); vm_seq += 1
            if ins.is_ds or ins.is_smem:
                lg.append((lg_seq, ins)); lg_seq += 1
        res = []
        nnop = 0
        for ins in out:
            need = 0
            dist = 0
            for prev in reversed(res):
                if dist >= 20: break
                req = 0
                pv = {r for r in prev.wr if r[0] in "va"}
                ps = {r for r in prev.wr if r[0] == "s"}
                if prev.is_mfma:
                    P = prev.passes
                    if ins.is_mfma:
                        if pv & (ins.srcA | ins.srcB): req = max(req, {4: 8, 8: 12}[P])
                        if pv & ins.srcC and ins.srcC != prev.dst: req = max(req, {4: 6, 8: 10}[P])
                        if pv & ins.dst and not (ins.srcC == prev.dst and ins.dst == prev.dst) and not (pv & ins.srcC): req = max(req, {4: 8, 8: 12}[P])
                    elif pv & (ins.rd | ins.wr): req = max(req, {4: 8, 8: 12}[P])
                    if ins.is_valu and (prev.srcC & ins.wr): req = max(req, {4: 3, 8: 7}[P])
                if prev.is_valu:
                    if ins.is_mfma and pv & ins.rd: req = max(req, 2)
                    if ins.is_mfma and ("s", "exec") in prev.wr: req = max(req, 4)
                    if ins.is_dpp and pv & ins.dppsrc: req = max(req, 2)
                    if ins.op.startswith("v_permlane") and pv & ins.rd: req = max(req, 2)
                    if ins.op.startswith(("v_readlane", "v_readfirstlane")) and pv & ins.rd: req = max(req, 1)
                    if prev.is_trans and ins.is_valu and not ins.is_trans and pv & ins.rd: req = max(req, 1)
                    if prev.is_trans and (ins.is_vmem or ins.is_ds) and pv & ins.rd: req = max(req, 1)
                    if ps & ins.rd:
                        if ins.is_vmem: req = max(req, 5)
                        elif ins.op.startswith(("v_readlane", "v_writelane")): req = max(req, 4)
                        elif ins.is_valu: req = max(req, 2)
                        elif ins.is_salu or ins.is_smem: req = max(req, 1)
                    if prev.op.startswith("v_dot") and pv & (ins.rd | ins.wr) and not (ins.op == prev.op): req = max(req, 3)
                    if ("op_sel" in prev.mods and not prev.op.startswith("v_pk")) and ins.is_valu and pv & (ins.rd | ins.wr): req = max(req, 1)
                if prev.is_salu:
                    if ("s", "m0") in prev.wr and (ins.is_ldsdma or "addtid" in ins.op): req = max(req, 1)
                    if ("s", "exec") in prev.wr and ins.is_dpp: req = max(req, 0)
                if (prev.is_store or (prev.is_ds and prev.op.startswith("ds_write"))) and ("x4" in prev.op or "x3" in prev.op or "b128" in prev.op):
                    dv = {r for r in prev.rd if r[0] in "va"}
                    if dv & ins.wr: req = max(req, 2)
                need = max(need, req - dist)
                dist += prev.slots()
            while need > 0:
                n = min(need, 16)
                res.append(Ins(f"s_nop {n-1}")); need -= n; nnop += 1
            res.append(ins)
        if verbose: print(f"; waits inserted {nwait}, nops inserted {nnop}, total {len(res)}")
        return [i.text for i in res]

def interleave(main, fill, per):
    out = []; k = 0
    for m in main:
        out.append(m)
        if isinstance(m, str) and m.strip().startswith("v_mfma"):
            for _ in range(per):
                if k < len(fill): out.append(fill[k]); k += 1
    return out, fill[k:]
```

```python
import sys
from asmlib import *

NAME = "gated_mix__ssm_conv_s4d__glu_gated_swiglu__prompt"
KN = NAME + "_kernel"
OPT = {a.split("=")[0]: (a.split("=") + ["1"])[1] for a in sys.argv[2:]}
STAMPS = "ts" in OPT
H_OFF, W2T_OFF, U4T_OFF, A2_OFF, G_OFF, FLAG_OFF, TS_OFF, WS_USED = 0, 0x700000, 0x900000, 0xB00000, 0xD00000, 0xD10000, 0xD80000, 0xE00000
F1_OFF, F2_OFF, F3_OFF = FLAG_OFF, FLAG_OFF + 0x1000, FLAG_OFF + 0x2000
WSLOTS = [34816, 63744, 0]
W3OFF = 14464
XR, XSLOT = 92672, 16384
KS, KSW = 0, 8704
KB, KBC = 141824, 4160
UB, UBC = 150144, 4608
TIN = XR + 2 * XSLOT
W2S = TIN + 8192
EX = 114688
RB = 114688
LOG2E, NLOG2E, INV2PI = 0x3fb8aa3b, 0xbfb8aa3b, 0x3e22f983
SC = " sc1"
SPIN_MAX = 200000

V_WOFF, V_XOFF, V_XRD, V_WRD, V_KF, V_UF, V_L16 = 16, 24, 28, 32, 35, 36, 37
V_T0, V_L0 = 38, 39
V_8x128 = 23
ACC1 = 128
WF = [64, 96]; XF = [92, 124]
A_W2, A_KF, A_UF = 0, 112, 176
S_W, S_MT, S_FT, S_WP, S_WH, S_J, S_RH, S_FQ, S_MT64, S_NT, S_NONCE = 24, 25, 26, 28, 29, 30, 31, 32, 33, 34, 35

p = Prog()
slow = Prog()
nstamp = 0
def stamp(name):
    global nstamp
    if not STAMPS: return
    i = nstamp; nstamp += 1
    p("s_memtime s[96:97]\ns_memrealtime s[98:99]\ns_waitcnt lgkmcnt(0)")
    p(f"v_writelane_b32 v255, s96, {2*i}\nv_writelane_b32 v255, s98, {2*i+1}")

def cmul(d, a, b):
    return [f"v_pk_mul_f32 v[{d}:{d+1}], v[{a}:{a+1}], v[{b}:{b+1}] op_sel:[0,0] op_sel_hi:[1,0]",
            f"v_pk_fma_f32 v[{d}:{d+1}], v[{a}:{a+1}], v[{b}:{b+1}], v[{d}:{d+1}] op_sel:[1,1,0] op_sel_hi:[0,1,1] neg_lo:[1,0,0]"]

def dma_groups(st):
    slot = st % 3
    g0 = [f"s_add_u32 m0, s70, {slot * XSLOT}", f"s_movk_i32 s73, {st * 128}"]
    g0 += [f"buffer_load_dwordx4 v{V_XOFF+j}, s[4:7], s73 offen offset:{1024*j} lds" for j in range(4)]
    g1 = [f"s_add_u32 m0, s71, {WSLOTS[slot]}", f"s_add_u32 s74, s72, {st * 64 * 3584}"]
    g1 += [f"buffer_load_dwordx4 v{V_WOFF+j}, s[8:11], s74 offen offset:{1024*j} lds" for j in range(4)]
    g2 = [f"s_add_u32 m0, s71, {WSLOTS[slot] + 4096}"]
    g2 += [f"buffer_load_dwordx4 v{V_WOFF+j}, s[8:11], s74 offen offset:{1024*(j-4)} lds" for j in range(4, 7)]
    return [g0, g1, g2]

def frag_reads(q):
    st, s = q >> 2, q & 3
    slot = st % 3; b = q & 1
    o = [f"ds_read_b128 v[{XF[b]}:{XF[b]+3}], v{V_XRD+s} offset:{slot * XSLOT}"]
    for t in range(7):
        for h in range(2):
            r = WF[b] + 4 * t + 2 * h
            o.append(f"ds_read_b64_tr_b16 v[{r}:{r+1}], v{V_WRD+slot} offset:{(16*s + 4*h) * 224 + 32*t}")
    return o

npoll = 0
def poll_check(vreg, reload_lines, combine_lines):
    global npoll
    k = npoll; npoll += 1
    def f(pp):
        for l in combine_lines: pp(l)
        pp(f"v_cmp_ne_u32 vcc, s{S_NONCE}, v{vreg}")
        pp(f"s_cbranch_vccnz L_slow{k}")
        pp(f"L_back{k}:")
    slow(f"L_slow{k}:\ns_mov_b32 s69, 0\nL_slowloop{k}:")
    for l in reload_lines: slow(l)
    slow("s_waitcnt vmcnt(0)")
    for l in combine_lines: slow(l)
    slow(f"""s_add_u32 s69, s69, 1
             s_cmp_ge_u32 s69, {SPIN_MAX}
             s_cbranch_scc1 L_back{k}
             v_cmp_ne_u32 vcc, s{S_NONCE}, v{vreg}
             s_cbranch_vccnz L_slowloop{k}
             s_branch L_back{k}""")
    return f

p("s_cmp_ge_u32 s2, 256\ns_cbranch_scc1 L_end")
p("""s_load_dwordx16 s[36:51], s[0:1], 0
     s_load_dwordx8 s[52:59], s[0:1], 64
     s_load_dwordx4 s[60:63], s[0:1], 96
     s_load_dwordx2 s[64:65], s[0:1], 112
     s_memrealtime s[76:77]
     s_getpc_b64 s[66:67]
     L_pc:
     v_lshrrev_b32 v2, 6, v0
     v_and_b32 v1, 63, v0
     s_lshr_b32 s30, s2, 3
     v_readfirstlane_b32 s24, v2
     v_lshrrev_b32 v3, 5, v0
     v_lshl_add_u32 v3, s30, 3, v3
     v_min_u32 v3, (L_code_end-L_pc)>>7, v3
     v_lshlrev_b32 v3, 7, v3
     global_load_dword v254, v3, s[66:67]""")
if STAMPS: p("v_mov_b32 v255, 0")
p("""v_lshrrev_b32 v3, 4, v1
     v_bfe_u32 v4, v1, 2, 2
     v_and_b32 v5, 3, v1
     v_lshrrev_b32 v6, 3, v1
     v_and_b32 v7, 7, v1
     v_and_b32 v8, 31, v1
     v_lshrrev_b32 v9, 5, v1
     s_and_b32 s31, s2, 1
     s_bfe_u32 s32, s2, 0x20001
     s_and_b32 s28, s24, 1
     s_lshr_b32 s29, s24, 1
     s_lshl_b32 s25, s31, 3
     s_and_b32 s27, s30, 7
     s_add_u32 s25, s25, s27
     s_lshl_b32 s26, s32, 2
     s_lshr_b32 s27, s30, 3
     s_add_u32 s26, s26, s27
     s_and_b32 s33, s2, 7
     s_lshl_b32 s33, s33, 2
     s_add_u32 s33, s33, s27
     s_and_b32 s34, s30, 7""")
p(f"""s_lshl_b32 s78, s2, 1
     s_add_u32 s78, s78, s29
     s_lshl_b32 s68, s78, 8
     s_lshl_b32 s69, s28, 7
     s_add_u32 s68, s68, s69
     v_lshl_add_u32 v10, v1, 1, s68
     v_mov_b32 v40, 0
     v_mov_b32 v41, 0
     v_mov_b32 v42, 0
     v_mov_b32 v43, 0
     v_lshlrev_b32 v{V_L16}, 4, v1
     v_lshlrev_b32 v{V_8x128}, 10, v6
     v_lshl_add_u32 v{V_8x128}, v7, 4, v{V_8x128}""")
p(f"""s_and_b32 s79, s30, 15
     s_lshl_b32 s68, s31, 4
     s_add_u32 s79, s79, s68
     s_lshr_b32 s80, s30, 4
     s_lshl_b32 s68, s32, 1
     s_add_u32 s80, s80, s68
     s_lshl_b32 s81, s79, 16
     s_lshl_b32 s68, s24, 14
     s_add_u32 s81, s81, s68
     s_lshl_b32 s68, s80, 7
     s_add_u32 s81, s81, s68
     s_add_u32 s82, s81, {8192-1024}
     s_lshl_b32 s68, s2, 2
     s_add_u32 s68, s68, s24
     s_sub_u32 s69, s68, 128
     s_cmp_lt_u32 s68, 896
     s_cselect_b32 s68, s68, s69
     s_and_b32 s83, s68, 7
     s_lshr_b32 s84, s68, 3
     s_lshl_b32 s85, s84, 14
     s_lshl_b32 s68, s83, 7
     s_add_u32 s85, s85, s68
     s_add_u32 s86, s85, {8192-1024}
     s_lshl_b32 s87, s32, 5
     s_add_u32 s87, s87, s30
     s_lshl_b32 s87, s87, 2
     s_add_u32 s87, s87, s24
     s_lshl_b32 s87, s87, 1
     s_lshl_b32 s68, s31, 10
     s_add_u32 s87, s87, s68
     s_lshl_b32 s88, s87, 10
     s_lshl_b32 s89, s24, 11
     s_add_u32 s90, s89, {W2S}
     s_add_u32 s89, s89, {TIN}""")
p("""v_and_b32 v11, 3, v6
     v_min_u32 v12, 6, v7
     v_mul_u32_u24 v11, 0x1c00, v11
     v_lshl_add_u32 v11, v12, 7, v11
     s_lshl_b32 s68, s30, 1
     s_add_u32 s68, s68, s29
     s_lshl_b32 s68, s68, 3
     s_add_u32 s68, s68, s31
     s_mul_i32 s91, s68, 3584
     s_mul_i32 s68, s32, 896
     s_add_u32 s91, s91, s68
     s_lshl_b32 s92, s2, 2""")
p("s_movk_i32 s68, 4682")
for j in range(7):
    p(f"""v_add_u32 v12, {64*j}, v1
          v_mul_u32_u24 v13, s68, v12
          v_lshrrev_b32 v13, 16, v13
          v_lshlrev_b32 v12, 4, v12
          v_mul_u32_u24 v13, {3584 - 224}, v13
          v_add3_u32 v{V_WOFF+j}, v12, v13, {0 if j % 4 == 0 else 0}""")
    if j % 4: p(f"v_subrev_u32 v{V_WOFF+j}, {1024*(j%4)}, v{V_WOFF+j}")
p("""s_lshl_b32 s68, s25, 7
     s_lshl_b32 s69, s24, 5
     s_add_u32 s68, s68, s69
     s_lshl_b32 s68, s68, 10
     v_lshrrev_b32 v12, 1, v6
     v_xor_b32 v12, v12, v7
     v_lshlrev_b32 v12, 4, v12
     v_lshl_add_u32 v12, v6, 10, v12""")
p(f"""v_add_u32 v{V_XOFF}, s68, v12
      v_xor_b32 v{V_XOFF+1}, 64, v{V_XOFF}
      v_add_u32 v{V_XOFF+1}, {8192-1024}, v{V_XOFF+1}
      v_add_u32 v{V_XOFF+2}, {2*(8192-1024)}, v{V_XOFF}
      v_add_u32 v{V_XOFF+3}, {2*(8192-1024)}, v{V_XOFF+1}""")
p(f"""s_lshl_b32 s70, s24, 12
     s_add_u32 s70, s70, {XR}
     s_mul_i32 s71, s28, {W3OFF}
     s_mul_i32 s68, s29, 7168
     s_add_u32 s71, s71, s68
     s_mul_i32 s72, s29, {32*3584}
     s_mul_i32 s68, s26, 224
     s_add_u32 s72, s72, s68""")
stamp("pre-kernarg")
p("s_waitcnt lgkmcnt(0)")
p("""global_load_short_d16_hi v40, v10, s[38:39]
     global_load_short_d16_hi v41, v10, s[40:41]
     global_load_short_d16_hi v42, v10, s[42:43]
     global_load_short_d16_hi v43, v10, s[44:45]
     s_load_dword s93, s[46:47], s92
     s_load_dword s94, s[48:49], s92
     s_cmp_eq_u32 s28, 0
     s_cselect_b32 s8, s52, s54
     s_cselect_b32 s9, s53, s55
     s_mov_b32 s10, %d
     s_mov_b32 s11, 0x20000
     buffer_load_dword v253, v11, s[8:11], s91 offen
     s_mov_b32 s4, s36
     s_mov_b32 s5, s37
     s_mov_b32 s6, 0x200000
     s_mov_b32 s7, 0x20000
     s_mov_b32 m0, s89""" % (512 * 3584))
p(f"""buffer_load_dwordx4 v{V_8x128}, s[4:7], s81 offen lds
      buffer_load_dwordx4 v{V_8x128}, s[4:7], s82 offen offset:1024 lds
      buffer_load_dwordx4 v[224:227], v{V_L16}, s[4:7], s88 offen
      buffer_load_dwordx4 v[228:231], v{V_L16}, s[4:7], s88 offen offset:1024
      global_load_dwordx4 v[232:235], v{V_L16}, s[58:59]
      s_mov_b32 s16, s56
      s_mov_b32 s17, s57
      s_mov_b32 s18, {1792*1024}
      s_mov_b32 s19, 0x20000
      s_mov_b32 m0, s90
      s_mov_b32 s12, s64
      buffer_load_dwordx4 v{V_8x128}, s[16:19], s85 offen lds
      buffer_load_dwordx4 v{V_8x128}, s[16:19], s86 offen offset:1024 lds""")
tk_b1 = p.mark()
p(f"""s_mov_b32 s13, s65
      s_mov_b32 s14, {WS_USED}
      s_mov_b32 s15, 0x20000
      s_mov_b32 s20, s60
      s_mov_b32 s21, s61
      s_mov_b32 s22, 0x200000
      s_mov_b32 s23, 0x20000""")
p(f"""v_mov_b32 v12, 0x40000000
      v_cmp_eq_u32 vcc, 0, v0
      v_cndmask_b32 v{V_T0}, v12, 0, vcc
      v_cmp_eq_u32 vcc, 0, v1
      v_cndmask_b32 v{V_L0}, v12, 0, vcc
      s_mov_b32 s16, s62
      s_mov_b32 s17, s63
      s_mov_b32 s18, 256
      s_or_b32 s76, s76, 1
      v_mov_b32 v13, s76
      s_lshl_b32 s68, s2, 10
      buffer_store_dword v13, v{V_T0}, s[16:19], s68 offen{SC}""")
p(f"""v_bfe_u32 v11, v8, 1, 3
      v_xor_b32 v11, v11, v9
      v_lshlrev_b32 v11, 4, v11
      v_lshl_add_u32 v11, v8, 7, v11
      v_add_u32 v{V_XRD}, s70, v11""")
for s in range(1, 4): p(f"v_xor_b32 v{V_XRD+s}, {32*s}, v{V_XRD}")
p(f"""v_and_b32 v11, 1, v3
      v_bfe_u32 v12, v5, 1, 1
      v_and_b32 v13, 1, v5
      v_lshl_add_u32 v13, v13, 1, v11
      v_mul_u32_u24 v12, {W3OFF}, v12
      v_lshl_add_u32 v12, v13, 3, v12
      v_lshl_add_u32 v13, v9, 3, v4
      v_mul_u32_u24 v14, 224, v13
      v_add_u32 v{V_WRD+2}, v12, v14
      v_add_u32 v{V_WRD}, {WSLOTS[0]}, v{V_WRD+2}
      v_add_u32 v{V_WRD+1}, {WSLOTS[1]}, v{V_WRD+2}""")
assert WSLOTS[2] == 0
p("""v_lshl_add_u32 v12, v11, 2, v5
     v_lshrrev_b32 v14, 1, v12
     v_and_b32 v15, 1, v12
     v_lshlrev_b32 v15, 5, v15
     v_lshl_add_u32 v15, v14, 3, v15
     v_lshl_add_u32 v15, v13, 7, v15
     v_add_u32 v44, s90, v15""")
p(f"""s_mul_i32 s75, s29, {KBC}
      s_add_u32 s75, s75, {KB}
      v_sub_u32 v12, v12, v13
      s_lshl_b32 s68, s28, 7
      s_add_u32 s69, s68, s75
      s_add_u32 s69, s69, 96
      v_lshl_add_u32 v{V_KF}, v12, 3, s69
      s_mul_i32 s77, s29, {UBC}
      s_add_u32 s77, s77, {UB}
      v_lshlrev_b32 v12, 4, v8
      v_lshl_add_u32 v12, v9, 6, v12
      s_sub_u32 s68, s77, s68
      s_add_u32 s68, s68, 192
      v_add_u32 v{V_UF}, s68, v12""")
p(f"""v_lshl_add_u32 v12, v4, 2, v3
      v_lshlrev_b32 v12, 7, v12
      v_lshl_add_u32 v12, v5, 3, v12
      s_lshl_b32 s68, s24, 5
      s_add_u32 s68, s68, {TIN}
      v_add_u32 v45, s68, v12
      v_and_b32 v12, 15, v1
      v_xor_b32 v13, v3, v7
      v_lshlrev_b32 v13, 4, v13
      v_lshl_add_u32 v13, v12, 7, v13
      v_add_u32 v46, s90, v13
      v_xor_b32 v13, v6, v7
      v_lshlrev_b32 v13, 4, v13
      v_lshl_add_u32 v13, v6, 7, v13
      v_add_u32 v47, s90, v13""")
p(f"""v_mov_b32 v48, 0
      v_mov_b32 v49, 0
      v_lshl_add_u32 v13, v1, 3, s77
      v_lshl_add_u32 v12, v12, 2, s75
      ds_write_b64 v13, v[48:49]
      ds_write_b32 v12, v48
      s_mul_i32 s76, s24, {KSW}
      v_mul_u32_u24 v15, 272, v8
      v_lshl_add_u32 v15, v9, 4, v15
      v_add_u32 v15, s76, v15
      s_waitcnt lgkmcnt(0)
      s_lshl_b32 s68, s29, 4
      s_lshr_b32 s93, s93, s68
      s_lshl_b32 s93, s93, 16
      s_lshr_b32 s94, s94, s68
      s_lshl_b32 s94, s94, 16""")
assert KS == 0
stamp("batch1 issued")
p(f"v_mov_b32 v50, s93\nv_mul_f32 v50, {LOG2E:#x}, v50\nv_exp_f32 v50, v50")
p.touch("v[40:43]")
stamp("params landed")
p(f"""v_mul_f32 v40, {LOG2E:#x}, v40
      v_exp_f32 v40, v40
      v_cvt_pk_bf16_f32 v51, v50, v40
      v_lshlrev_b32 v50, 16, v51
      v_and_b32 v40, 0xffff0000, v51
      v_mul_f32 v40, v40, v50
      v_mul_f32 v41, v41, v50
      v_mul_f32 v40, {NLOG2E:#x}, v40
      v_mul_f32 v41, {INV2PI:#x}, v41
      v_add_f32 v50, v50, v50
      v_mul_f32 v48, v42, v50
      v_mul_f32 v49, v43, v50""")
E1, E8, E256 = 50, 52, 54
p(f"""v_mul_f32 v56, 0x41000000, v40
      v_mul_f32 v57, 0x41000000, v41
      v_mul_f32 v60, 0x43800000, v40
      v_mul_f32 v61, 0x43800000, v41
      v_exp_f32 v56, v56
      v_fract_f32 v57, v57
      v_exp_f32 v60, v60
      v_fract_f32 v61, v61
      v_exp_f32 v40, v40
      v_fract_f32 v41, v41
      v_cos_f32 v58, v57
      v_sin_f32 v59, v57
      v_cos_f32 v62, v61
      v_sin_f32 v63, v61
      v_cos_f32 v42, v41
      v_sin_f32 v43, v41
      v_mul_f32 v{E8}, v56, v58
      v_mul_f32 v{E8+1}, v56, v59
      v_mul_f32 v{E256}, v60, v62
      v_mul_f32 v{E256+1}, v60, v63
      v_mul_f32 v{E1}, v40, v42
      v_mul_f32 v{E1+1}, v40, v43""")
dgroups = dma_groups(0) + [None] + dma_groups(1) + [None]
tk_st = {}
gi = 0
def next_dma_group():
    global gi
    while gi < len(dgroups):
        g = dgroups[gi]; gi += 1
        if g is None:
            continue
        for i in g: p(i)
        if gi < len(dgroups) and dgroups[gi] is None:
            tk_st[0 if gi == 3 else 1] = p.mark()
        return
TB = [240, 56]
def flush(batch, k):
    p("s_mov_b32 m0, s76")
    for (reg, row) in batch: p(f"ds_write_addtid_b32 v{reg} offset:{272*row}")
cur = E8; ping = [128, 130]
for bt in range(4):
    T = TB[bt & 1]; batch = []
    for jj in range(8):
        j = 8 * bt + jj
        if j == 0: p(f"v_mov_b32 v{T}, 0x3f80")
        elif j == 1: p(f"v_cvt_pk_bf16_f32 v{T+1}, v{E8}, v{E8+1}")
        else:
            d = ping[j & 1]
            for i in cmul(d, cur, E8): p(i)
            p(f"v_cvt_pk_bf16_f32 v{T+jj}, v{d}, v{d+1}")
            cur = d
        batch.append((T + jj, j))
    flush(batch, bt)
    if bt == 3:
        YF, XFR = 160, 192
        for s in range(8): p(f"ds_read_b128 v[{YF+4*s}:{YF+4*s+3}], v15 offset:{32*s}")
    next_dma_group()
rows = {}
lists = [[0,1,2,3, 256,258,260,None, 512,516,520,None, 1024,1032,1280,1288],
         [4,5,6,7, 260,262,264,None, 768,772,776,None, 1536,1544,1792,1800]]
for hh in range(2):
    for k, pos in enumerate(lists[hh]):
        if pos is not None: rows.setdefault(pos, []).append(8 * (k >> 2) + 4 * hh + (k & 3))
xr = {0: 48}
seq = [(0, None, None)]
for pos in range(1, 9): seq.append((pos, pos - 1, E1))
for base in range(256, 2048, 256):
    offs = (0, 2, 4, 6, 8) if base == 256 else ((0, 4, 8) if base < 1024 else (0, 8))
    for o in offs: seq.append((base + o, base - 256 + o, E256))
free = list(range(128, 160, 2)) + list(range(64, 96, 2))
batch = []; nb = 0; cnt = 0
for idx, (pos, src, e) in enumerate(seq):
    if src is not None:
        d = free.pop(0); xr[pos] = d
        for i in cmul(d, xr[src], e): p(i)
    if pos in rows:
        T = TB[nb & 1] + cnt; cnt += 1
        p(f"v_cvt_pk_bf16_f32 v{T}, v{xr[pos]}, -v{xr[pos]+1}")
        for m in rows[pos]: batch.append((T, m))
    if cnt == 7 or idx == len(seq) - 1:
        flush(batch, nb); batch = []; nb += 1; cnt = 0
        if idx < len(seq) - 1: next_dma_group()
for s in range(8): p(f"ds_read_b128 v[{XFR+4*s}:{XFR+4*s+3}], v15 offset:{32*s}")
while gi < len(dgroups): next_dma_group()
stamp("kgen chains done")
p.wait_vm(tk_b1)
for t in range(2):
    for h in range(2):
        r = 64 + t * 4 + h * 2
        p(f"ds_read_b64_tr_b16 v[{r}:{r+1}], v44 offset:{4*h*128 + 64*t}")
KD = 128
gate = ["v_mov_b32 v56, 0", "v_mov_b32 v57, 0"]
for i in range(4):
    gate += [f"v_dot2_f32_bf16 v56, v{224+i}, v{232+i}, v56", f"v_dot2_f32_bf16 v57, v{228+i}, v{232+i}, v57"]
gate += ["s_mul_i32 s68, s83, 112", "s_add_u32 s68, s68, s84", "s_lshl_b32 s68, s68, 11"]
for sh in ("row_shr:1", "row_shr:2", "row_shr:4", "row_shr:8"):
    gate += [f"v_add_f32_dpp v{r}, v{r}, v{r} {sh} row_mask:0xf bank_mask:0xf bound_ctrl:0" for r in (56, 57)] + ["s_nop 0"]
gate += [f"v_add_f32_dpp v{r}, v{r}, v{r} row_bcast:15 row_mask:0xa bank_mask:0xf" for r in (56, 57)] + [f"s_add_u32 s68, s68, {W2T_OFF}"]
gate += [f"v_add_f32_dpp v{r}, v{r}, v{r} row_bcast:31 row_mask:0xc bank_mask:0xf" for r in (56, 57)]
gate += f"""v_cvt_pk_bf16_f32 v58, v56, v57
     v_lshlrev_b32 v56, 16, v58
     v_and_b32 v57, 0xffff0000, v58
     v_mul_f32 v56, {NLOG2E:#x}, v56
     v_mul_f32 v57, {NLOG2E:#x}, v57
     v_exp_f32 v56, v56
     v_exp_f32 v57, v57
     v_cmp_eq_u32 vcc, 63, v1
     v_add_f32 v56, 1.0, v56
     v_add_f32 v57, 1.0, v57
     v_rcp_f32 v56, v56
     v_rcp_f32 v57, v57
     v_mov_b32 v59, 0x40000000
     v_cvt_pk_bf16_f32 v58, v56, v57
     v_cndmask_b32 v59, v59, 0, vcc
     v_lshlrev_b32 v56, 16, v58
     v_and_b32 v57, 0xffff0000, v58
     s_lshl_b32 s69, s87, 2
     s_add_u32 s69, s69, {G_OFF}""".split("\n")
for s in range(8):
    c = "0" if s == 0 else f"v[{KD}:{KD+15}]"
    p(f"v_mfma_f32_32x32x16_bf16 v[{KD}:{KD+15}], v[{XFR+4*s}:{XFR+4*s+3}], v[{YF+4*s}:{YF+4*s+3}], {c}")
    for _ in range(5):
        if gate: p(gate.pop(0))
for i in gate: p(i)
p(f"buffer_store_dwordx2 v[56:57], v59, s[12:15], s69 offen{SC}")
for t in range(2):
    p(f"buffer_store_dwordx4 v[{64+4*t}:{67+4*t}], v{V_L16}, s[12:15], s68 offen offset:{1024*t}{SC}")
p(f"""v_add_u32 v14, s76, v{V_L16}
      s_xor_b32 s68, s24, 1
      s_mul_i32 s68, s68, {KSW}
      v_add_u32 v15, s68, v{V_L16}""")
for i in range(4): p(f"ds_write_b128 v14, v[{KD+4*i}:{KD+4*i+3}] offset:{1024*i}")
p("s_waitcnt lgkmcnt(0)\ns_barrier")
for blk in range(2):
    for h in range(2):
        r = 72 + blk * 4 + h * 2
        p(f"ds_read_b64_tr_b16 v[{r}:{r+1}], v45 offset:{(32*blk + 16*h) * 128}")
for i in range(4): p(f"ds_read_b128 v[{144+4*i}:{144+4*i+3}], v15 offset:{1024*i}")
p("""v_lshl_add_u32 v12, v8, 4, s75
     v_lshl_add_u32 v13, v9, 3, v12
     v_lshl_add_u32 v14, v9, 9, v12
     v_lshl_add_u32 v15, v9, 10, v12
     v_cmp_eq_u32 vcc, 0, v1
     v_mov_b32 v60, s94
     v_xor_b32 v11, 64, v46
     v_cndmask_b32 v60, 0, v60, vcc
     v_and_b32 v61, 1, v1
     v_cmp_eq_u32 vcc, 1, v61""")
p("ds_write_b128 v46, v[72:75]\nds_write_b128 v11, v[76:79]")
for j in range(2): p(f"ds_read_b128 v[{80+4*j}:{83+4*j}], v47 offset:{1024*j}")
for i in range(16):
    if i in (7, 11): continue
    p(f"v_add_f32 v{KD+i}, v{KD+i}, v{144+i}")
k = lambda i: f"v{KD+i}"
p(f"""v_add_f32 {k(0)}, {k(0)}, v60
      v_cvt_pk_bf16_f32 v49, {k(2)}, {k(3)}
      v_cvt_pk_bf16_f32 v48, {k(0)}, {k(1)}
      v_cvt_pk_bf16_f32 v50, {k(4)}, {k(4)}
      v_cvt_pk_bf16_f32 v51, {k(5)}, {k(6)}
      v_cvt_pk_bf16_f32 v52, {k(8)}, {k(8)}
      v_cvt_pk_bf16_f32 v53, {k(8)}, {k(9)}
      v_cvt_pk_bf16_f32 v54, {k(9)}, {k(9)}
      v_cvt_pk_bf16_f32 v55, {k(10)}, {k(10)}""")
for b in range(2):
    v, vn = k(12 + 2*b), k(13 + 2*b); r = 56 + 4*b
    p(f"""v_cndmask_b32 v12, {v}, {vn}, vcc
          v_cvt_pk_bf16_f32 v{r}, {v}, {v}
          v_cvt_pk_bf16_f32 v{r+1}, {v}, {v}
          v_cvt_pk_bf16_f32 v{r+2}, v12, {vn}
          v_cvt_pk_bf16_f32 v{r+3}, {vn}, {vn}""")
p(f"""ds_write_b64 v13, v[48:49] offset:64
      ds_write_b64 v13, v[50:51] offset:{64+512}
      ds_write_b128 v14, v[52:55] offset:{64+1024}
      ds_write_b128 v15, v[56:59] offset:{64+2048}
      ds_write_b128 v15, v[60:63] offset:{64+2048+512}""")
p(f"""v_lshlrev_b32 v12, 12, v6
      v_lshl_add_u32 v12, v7, 4, v12
      s_lshl_b32 s68, s80, 18
      s_lshl_b32 s69, s24, 16
      s_add_u32 s68, s68, s69
      s_lshl_b32 s69, s79, 7
      s_add_u32 s68, s68, s69
      s_add_u32 s68, s68, {U4T_OFF}
      s_add_u32 s69, s68, 32768
      buffer_store_dwordx4 v[80:83], v12, s[12:15], s68 offen{SC}
      buffer_store_dwordx4 v[84:87], v12, s[12:15], s69 offen{SC}
      v_mov_b32 v40, 0
      global_load_dword v41, v40, s[62:63]{SC}""")
stamp("pre G1 (before D0 wait)")
p("s_waitcnt lgkmcnt(0)")
p.wait_vm(tk_st[0])
p("s_barrier")
stamp("G1 start")
def flat(gs): return [i for g in gs for i in g]
def mark_stage(st):
    def f(pp): tk_st[st] = pp.mark()
    return f
def nonce_check(pp):
    pp(f"v_readfirstlane_b32 s{S_NONCE}, v41")
    pp(f"s_cmp_eq_u32 s{S_NONCE}, 0\ns_cbranch_scc1 L_slown\nL_backn:")
slow(f"""L_slown:
         s_mov_b32 s69, 0
         L_slownloop:
         global_load_dword v41, v40, s[62:63]{SC}
         s_waitcnt vmcnt(0)
         v_readfirstlane_b32 s{S_NONCE}, v41
         s_add_u32 s69, s69, 1
         s_cmp_ge_u32 s69, {SPIN_MAX}
         s_cbranch_scc1 L_backn
         s_cmp_eq_u32 s{S_NONCE}, 0
         s_cbranch_scc1 L_slownloop
         s_branch L_backn""")
f1_store = [nonce_check, f"v_mov_b32 v42, s{S_NONCE}", f"s_add_u32 s68, s92, {F1_OFF}", f"buffer_store_dword v42, v{V_T0}, s[12:15], s68 offen{SC}"]
f1_ld = f"buffer_load_dwordx4 v[44:47], v{V_L16}, s[12:15], s95 offen{SC}"
f1_load = [f"s_mov_b32 s95, {F1_OFF}", f1_ld]
f1_chk = poll_check(44, [f1_ld], ["v_xor_b32 v44, v44, v42", "v_xor_b32 v45, v45, v42", "v_xor_b32 v46, v46, v42", "v_xor_b32 v47, v47, v42", "v_or3_b32 v44, v44, v45, v46", "v_or_b32 v44, v44, v47", "v_xor_b32 v44, v44, v42"])
V_W2A, V_W2B, V_HA, V_HB, V_G = 10, 11, 12, 13, 43
after_f1 = [f1_chk,
    "s_lshl_b32 s68, s78, 12", "s_lshl_b32 s69, s28, 11", "s_add_u32 s68, s68, s69", f"s_add_u32 s68, s68, {U4T_OFF}",
    "s_add_u32 s69, s69, s77", "s_add_u32 m0, s69, 512",
    f"buffer_load_dwordx4 v{V_L16}, s[12:15], s68 offen{SC} lds", f"buffer_load_dwordx4 v{V_L16}, s[12:15], s68 offen offset:1024{SC} lds",
    "s_lshl_b32 s79, s33, 6", "s_lshl_b32 s69, s29, 5", "s_add_u32 s79, s79, s69", "s_lshl_b32 s68, s79, 2", f"s_add_u32 s68, s68, {G_OFF}",
    "v_lshlrev_b32 v14, 2, v8", f"buffer_load_dword v{V_G}, v14, s[12:15], s68 offen{SC}"]
w2_setup = ["s_mul_i32 s80, s34, 112", "s_mul_i32 s81, s24, 28", "s_add_u32 s80, s80, s81", "s_lshl_b32 s80, s80, 11", f"s_add_u32 s80, s80, {W2T_OFF}",
            "s_lshl_b32 s68, s28, 10", f"v_add_u32 v{V_W2A}, s68, v{V_L16}", f"v_xor_b32 v{V_W2B}, 1024, v{V_W2A}"]
w2_loads = []
for st in range(14):
    if st % 2 == 0 and st: w2_loads.append("s_add_u32 s80, s80, 4096")
    for t in range(2):
        r = A_W2 + 8 * st + 4 * t
        w2_loads.append(f"buffer_load_dwordx4 a[{r}:{r+3}], v{V_W2A+t}, s[12:15], s80 offen offset:{2048*(st%2)}{SC}")
w2_loads.append("s_add_u32 s80, s80, 4096")
kf_reads = []
for s in range(16):
    kf_reads.append(f"ds_read_b64_tr_b16 a[{A_KF+4*s}:{A_KF+4*s+1}], v{V_KF} offset:{256*s + 32}")
    kf_reads.append(f"ds_read_b64_tr_b16 a[{A_KF+4*s+2}:{A_KF+4*s+3}], v{V_KF} offset:{256*s}")
uf_reads = [f"ds_read_b128 a[{A_UF+4*s}:{A_UF+4*s+3}], v{V_UF} offset:{256*s}" for s in range(16)]
h17 = len(w2_loads) // 2
fill = {0: flat(dma_groups(2)) + [mark_stage(2)],
        1: flat(dma_groups(3)) + [mark_stage(3)],
        2: f1_store + flat(dma_groups(4)) + [mark_stage(4)],
        3: flat(dma_groups(5)) + [mark_stage(5)],
        4: flat(dma_groups(6)) + [mark_stage(6)] + f1_load,
        5: flat(dma_groups(7)[:2]) + after_f1 + dma_groups(7)[2] + [mark_stage(7)] + w2_setup,
        6: w2_loads[:h17],
        7: w2_loads[h17:]}
lfill = {6: kf_reads[:24], 7: kf_reads[24:] + uf_reads}
for i in frag_reads(0): p(i)
for st in range(8):
    fl = list(fill[st]); lf = list(lfill.get(st, []))
    ngaps = 22 if st < 7 else 27
    nf, nl = len(fl), len(lf)
    gap = 0
    for s in range(4):
        q = 4 * st + s; b = q & 1
        nxt = frag_reads(q + 1) if q < 31 else []
        for t in range(7):
            if t == 0: p.touch(f"v[{XF[b]}:{XF[b]+3}]", f"v[{WF[b]}:{WF[b]+11}]")
            if t == 3: p.touch(f"v[{WF[b]+12}:{WF[b]+27}]")
            a = ACC1 + 16 * t
            c = "0" if q == 0 else f"v[{a}:{a+15}]"
            p(f"v_mfma_f32_32x32x16_bf16 v[{a}:{a+15}], v[{WF[b]+4*t}:{WF[b]+4*t+3}], v[{XF[b]}:{XF[b]+3}], {c}")
            if s == 3 and q < 31:
                if t == 1:
                    assert not fl and not lf
                    p("s_waitcnt lgkmcnt(0)")
                    p.wait_vm(tk_st[st + 1])
                    p("s_barrier")
                    if STAMPS and st in (0, 2, 4): stamp(f"G1 barrier {st}->{st+1}")
                if t >= 1:
                    for _ in range(3):
                        if nxt: p(nxt.pop(0))
                    continue
            else:
                for _ in range(3 if t == 0 else 2):
                    if nxt: p(nxt.pop(0))
            gap += 1
            while lf and (nl - len(lf)) < (gap * nl + ngaps - 1) // ngaps: p.add(lf.pop(0))
            while fl and (nf - len(fl)) < (gap * nf + ngaps - 1) // ngaps: p.add(fl.pop(0))
        assert not nxt
    assert not fl and not lf
p("s_waitcnt lgkmcnt(0)\ns_barrier")
stamp("G1 end")
p("""s_lshl_b32 s84, s25, 2
     s_add_u32 s84, s84, s24
     s_mul_i32 s82, s84, 112
     s_mul_i32 s83, s26, 7
     s_add_u32 s82, s82, s83
     s_lshl_b32 s82, s82, 10
     s_add_u32 s83, s82, 4096
     s_mul_i32 s85, s24, 28672""")
E = []
for t in range(7):
    a = ACC1 + 16 * t
    T = 48 + 8 * (t & 1)
    for half in range(2):
        g0, u0 = a + 8 * half, a + 8 * half + 4
        E += [f"v_mul_f32 v{T+i}, {NLOG2E:#x}, v{g0+i}" for i in range(4)]
        E += [f"v_exp_f32 v{T+i}, v{T+i}" for i in range(4)]
        E += [f"v_mul_f32 v{g0+i}, v{g0+i}, v{u0+i}" for i in range(4)]
        E += [f"v_add_f32 v{T+i}, 1.0, v{T+i}" for i in range(4)]
        E += [f"v_rcp_f32 v{T+i}, v{T+i}" for i in range(4)]
        E += [f"v_mul_f32 v{g0+i}, v{g0+i}, v{T+i}" for i in range(4)]
        E += [f"v_cvt_pk_bf16_f32 v{T+4+2*half}, v{g0}, v{g0+1}", f"v_cvt_pk_bf16_f32 v{T+5+2*half}, v{g0+2}, v{g0+3}"]
    E.append(f"buffer_store_dwordx4 v[{T+4}:{T+7}], v{V_L16}, s[12:15], {'s82' if t < 4 else 's83'} offen offset:{1024*(t%4)}{SC}")
    E.append(f"s_add_u32 m0, s85, {4096*t}")
    E += [f"buffer_load_dwordx4 v{V_L16}, s[12:15], s80 offen offset:{1024*i}{SC} lds" for i in range(4)] if t < 6 else []
    if t < 6: E.append("s_add_u32 s80, s80, 4096")
CA = [64, 80, 96, 128, 144, 160, 176, 192]
M = []
for tau in range(8):
    a = CA[tau]
    for sp in range(2 * tau + 2):
        v2 = 2 * tau - sp + 1
        c = "0" if sp == 0 else f"v[{a}:{a+15}]"
        M.append(f"v_mfma_f32_32x32x16_bf16 v[{a}:{a+15}], a[{A_UF+4*v2}:{A_UF+4*v2+3}], a[{A_KF+4*sp}:{A_KF+4*sp+3}], {c}")
NM1 = 30
step = len(E) / NM1
mi = 0
for i, e in enumerate(E):
    if mi < NM1 and i >= mi * step: p(M[mi]); mi += 1
    p(e)
tk_h = p.mark()
for i in range(4): p(f"buffer_load_dwordx4 v{V_L16}, s[12:15], s80 offen offset:{1024*i}{SC} lds")
tk_w2l = p.mark()
stamp("C1 end")
P2 = [112, 113, 114, 115]; P1 = [116, 117, 118, 119]
dm = "row_mask:0xf bank_mask:0xf"
def shift_add(tau):
    a = CA[tau]; Y = 120 + 4 * (tau & 1); o = []
    z = lambda qd, j: a + 4 * qd + j
    if tau == 0:
        o += [f"v_mov_b32 v{P1[0]}, v{z(0,1)}", f"v_mov_b32 v{Y}, v{z(0,0)}", f"v_mov_b32 v{P2[0]}, v{z(0,2)}"]
    else:
        o += [f"v_add_f32_dpp v{P1[0]}, v{P2[3]}, v{z(0,1)} wave_ror:1 {dm}", f"v_add_f32_dpp v{Y}, v{P1[3]}, v{z(0,0)} wave_ror:1 {dm}",
              f"v_add_f32_dpp v{P2[0]}, v{CA[tau-1]+15}, v{z(0,2)} wave_ror:1 {dm}"]
    o += [f"v_add_f32_dpp v{P2[q]}, v{z(q-1,3)}, v{z(q,2)} wave_ror:1 {dm}" for q in range(1, 4)]
    o += [f"v_add_f32_dpp v{P2[q]}, v{z(q,3)}, v{z(q,2)} wave_shr:1 {dm}" for q in range(4)]
    o += [f"v_add_f32_dpp v{P1[q]}, v{P2[q-1]}, v{z(q,1)} wave_ror:1 {dm}" for q in range(1, 4)]
    o += [f"v_add_f32_dpp v{P1[q]}, v{P2[q]}, v{z(q,1)} wave_shr:1 {dm}" for q in range(4)]
    o += [f"v_add_f32_dpp v{Y+q}, v{P1[q-1]}, v{z(q,0)} wave_ror:1 {dm}" for q in range(1, 4)]
    o += [f"v_add_f32_dpp v{Y+q}, v{P1[q]}, v{z(q,0)} wave_shr:1 {dm}" for q in range(4)]
    o.append(f"ds_write_b128 v14, v[{Y}:{Y+3}] offset:{1024*tau}")
    return o
p(f"s_lshl_b32 s68, s24, 13\ns_add_u32 s68, s68, {EX}\nv_add_u32 v14, s68, v{V_L16}")
def f2_store(pp):
    pp.wait_vm(tk_h)
    pp(f"buffer_store_dword v42, v{V_L0}, s[12:15], s86 offen{SC}")
misc = ["s_lshl_b32 s86, s84, 4", "s_add_u32 s86, s86, s26", "s_lshl_b32 s86, s86, 2", f"s_add_u32 s86, s86, {F2_OFF}",
        "v_and_b32 v15, 1, v4", "v_lshl_add_u32 v15, v15, 4, v5", "v_lshlrev_b32 v15, 2, v15",
        "s_lshl_b32 s87, s33, 7", "s_lshl_b32 s68, s24, 4", "s_add_u32 s87, s87, s68", f"s_add_u32 s87, s87, {F2_OFF}",
        "s_mul_i32 s88, s33, 224", "s_add_u32 s88, s88, s81", "s_lshl_b32 s88, s88, 10",
        f"s_mul_i32 s68, s29, {112*1024}", f"s_sub_u32 s69, {112*1024}, s68", f"v_add_u32 v{V_HA}, s68, v{V_L16}", f"v_add_u32 v{V_HB}, s69, v{V_L16}"]
S = misc + shift_add(0) + shift_add(1) + shift_add(2) + shift_add(3) + [f2_store] + shift_add(4)
S5, S6, S7 = shift_add(5), shift_add(6), shift_add(7)
rest = M[NM1:]
PER = int(OPT.get("c2per", 4))
for i, m in enumerate(rest):
    p(m)
    if i == 13: S += S5
    if i == 27: S += S6
    for _ in range(PER + (1 if i % 2 else 0)):
        if S: p.add(S.pop(0))
f2_ld = f"buffer_load_dword v44, v15, s[12:15], s87 offen{SC}"
p(f2_ld)
for i in S: p.add(i)
for i in S7: p(i)
p(f"s_lshl_b32 s68, s24, 11\ns_add_u32 s68, s68, {EX}\nv_add_u32 v14, s68, v{V_L16}")
p("s_waitcnt lgkmcnt(0)\ns_barrier")
stamp("C2 end")
for tt in range(2):
    for src in range(4):
        r = 64 + 16 * tt + 4 * src
        p(f"ds_read_b128 v[{r}:{r+3}], v14 offset:{8192*src + 1024*tt}")
p.add(poll_check(44, [f2_ld], []))
stamp("F2 ok")
HR = 128
def hfr(step, k): return HR + 8 * (step % 14) + 4 * k
def hloads(step):
    o = []
    if step % 4 == 0 and step: o.append("s_add_u32 s88, s88, 4096")
    for k2 in range(2): o.append(f"buffer_load_dwordx4 v[{hfr(step,k2)}:{hfr(step,k2)+3}], v{V_HA+k2}, s[12:15], s88 offen offset:{1024*(step%4)}{SC}")
    return o
DEPTH = 12
for s in range(4):
    for i in hloads(s): p(i)
p(f"""s_lshl_b32 s68, s2, 13
      s_lshl_b32 s69, s24, 11
      s_add_u32 s68, s68, s69
      s_add_u32 s68, s68, {A2_OFF}
      v_lshlrev_b32 v14, 2, v1""")
for tt in range(2):
    for qd in range(4):
        r = 64 + 16 * tt + qd
        p(f"v_add_f32 v{r}, v{r}, v{r+4}\nv_add_f32 v{r+8}, v{r+8}, v{r+12}")
for tt in range(2):
    for qd in range(4):
        r = 64 + 16 * tt + qd
        p(f"v_cvt_pk_bf16_f32 v{48+4*tt+qd}, v{r}, v{r+8}")
for tt in range(2):
    for qd in range(4):
        p(f"buffer_store_dword v{48+4*tt+qd}, v14, s[12:15], s68 offen offset:{1024*tt + 256*qd}{SC}")
tk_a = p.mark()
for s in range(4, DEPTH):
    for i in hloads(s): p(i)
stamp("G2 start")
ACC = 64
V_W2LA, V_W2LB, V_F3, V_AO = 16, 17, 18, 19
A_WL = 112
def wfr(step, t): return (A_W2 + 8 * step + 4 * t) if step < 14 else (A_WL + 8 * (step % 4) + 4 * t)
def wreads(step): return [f"ds_read_b128 a[{wfr(step,t)}:{wfr(step,t)+3}], v{V_W2LA+t} offset:{2048*(step-14)}" for t in range(2)]
def f3_store(pp):
    pp.wait_vm(tk_a)
    pp(f"buffer_store_dword v42, v{V_L0}, s[12:15], s86 offen{SC}")
f3_ld = f"buffer_load_dword v44, v{V_F3}, s[12:15], s87 offen{SC}"
aloads = []
for i in range(8):
    aloads.append(f"buffer_load_dword v{240+i}, v{V_AO}, s[12:15], s89 offen{SC}")
    if i < 7: aloads.append("s_add_u32 s89, s89, 8192")
gaprep = [f"v_sub_f32 v45, 1.0, v{V_G}"]
for i in range(8):
    gaprep += [f"v_lshlrev_b32 v{48+2*i}, 16, v{240+i}", f"v_and_b32 v{49+2*i}, 0xffff0000, v{240+i}",
               f"v_mul_f32 v{48+2*i}, v{V_G}, v{48+2*i}", f"v_mul_f32 v{49+2*i}, v{V_G}, v{49+2*i}"]
extra = {
    0: [f"v_add_u32 v{V_W2LA}, s85, v{V_W2A}", f"v_add_u32 v{V_W2LB}, s85, v{V_W2B}",
        "s_lshl_b32 s86, s24, 10", "s_add_u32 s86, s86, s92", f"s_add_u32 s86, s86, {F3_OFF}"],
    1: ["s_lshr_b32 s87, s33, 3", "s_lshl_b32 s87, s87, 10", "s_lshl_b32 s90, s34, 5", "s_lshl_b32 s68, s28, 4", "s_add_u32 s90, s90, s68",
        "s_lshl_b32 s68, s90, 2"],
    2: ["s_add_u32 s87, s87, s68", f"s_add_u32 s87, s87, {F3_OFF}", f"v_and_b32 v{V_F3}, 15, v1", f"v_lshlrev_b32 v{V_F3}, 2, v{V_F3}",
        "s_lshl_b32 s89, s90, 13", "s_lshl_b32 s68, s79, 2"],
    3: ["s_add_u32 s89, s89, s68", f"s_add_u32 s89, s89, {A2_OFF}", f"v_lshlrev_b32 v{V_AO}, 2, v8", f"v_lshl_add_u32 v{V_AO}, v9, 16, v{V_AO}"],
    4: [f3_store],
    8: ["s_barrier"],
    16: [f3_ld],
    20: [poll_check(44, [f3_ld], [])] + aloads[:7],
    21: aloads[7:],
    22: ["s_lshl_b32 s91, s79, 10", "s_lshl_b32 s68, s34, 7", "s_add_u32 s91, s91, s68", "s_lshl_b32 s68, s28, 6", "s_add_u32 s91, s91, s68",
         "v_lshlrev_b32 v20, 10, v8", "v_lshl_add_u32 v20, v9, 5, v20"],
    23: sum([[f"s_xor_b32 s69, s24, {c}", "s_mul_i32 s69, s69, 12288", f"s_add_u32 s69, s69, {RB}", f"v_add_u32 v{24+c}, s69, v{V_L16}"] for c in range(4)], []),
    25: gaprep[:11], 26: gaprep[11:22], 27: gaprep[22:],
}
for s in range(28):
    nx = (hloads(s + DEPTH) if s + DEPTH < 28 else [])
    if 14 <= s + 2 < 28:
        if s + 2 == 14: nx = [lambda pp: pp.wait_vm(tk_w2l)] + nx
        nx += wreads(s + 2)
    nx += extra.get(s, [])
    n = len(nx)
    for mi2 in range(4):
        t, lt = mi2 & 1, mi2 >> 1
        a = ACC + 16 * (2 * lt + t)
        c = "0" if s == 0 else f"v[{a}:{a+15}]"
        p(f"v_mfma_f32_32x32x16_bf16 v[{a}:{a+15}], a[{wfr(s,t)}:{wfr(s,t)+3}], v[{hfr(s,lt)}:{hfr(s,lt)+3}], {c}")
        while nx and (n - len(nx)) < ((mi2 + 1) * n + 3) // 4: p.add(nx.pop(0))
stamp("G2 end")
for c in range(1, 4):
    for i in range(4):
        a = ACC + 16 * c + 4 * i
        p(f"ds_write_b128 v{24+c}, v[{a}:{a+3}] offset:{4096*(c-1) + 1024*i}")
p("s_waitcnt lgkmcnt(0)\ns_barrier")
for i in range(4):
    for c in range(1, 4):
        a = ACC + 16 * c + 4 * i
        p(f"ds_read_b128 v[{a}:{a+3}], v24 offset:{4096*(c-1) + 1024*i}")
for i4 in range(4):
    for i in range(4*i4, 4*i4+4, 2):
        p(f"v_pk_add_f32 v[{ACC+i}:{ACC+i+1}], v[{ACC+i}:{ACC+i+1}], v[{ACC+16+i}:{ACC+16+i+1}]")
        p(f"v_pk_add_f32 v[{ACC+32+i}:{ACC+32+i+1}], v[{ACC+32+i}:{ACC+32+i+1}], v[{ACC+48+i}:{ACC+48+i+1}]")
    for i in range(4*i4, 4*i4+4, 2):
        p(f"v_pk_add_f32 v[{ACC+i}:{ACC+i+1}], v[{ACC+i}:{ACC+i+1}], v[{ACC+32+i}:{ACC+32+i+1}]")
    for i in range(4*i4, 4*i4+4):
        p(f"v_fma_f32 v{ACC+i}, v{ACC+i}, v45, v{48+i}")
    for i in range(2*i4, 2*i4+2):
        p(f"v_cvt_pk_bf16_f32 v{240+i}, v{ACC+2*i}, v{ACC+2*i+1}")
    if i4 % 2: p(f"buffer_store_dwordx4 v[{240+4*(i4//2)}:{243+4*(i4//2)}], v20, s[20:23], s91 offen offset:{16*(i4//2)}")
if STAMPS:
    stamp("stores issued")
    p("s_waitcnt vmcnt(0)")
    stamp("end")
    p(f"""s_lshl_b32 s68, s2, 2
          s_add_u32 s68, s68, s24
          s_lshl_b32 s68, s68, 8
          s_add_u32 s68, s68, {TS_OFF}
          v_lshlrev_b32 v14, 2, v1
          buffer_store_dword v255, v14, s[12:15], s68 offen""")
p("L_end:\ns_endpgm")
body = p.finalize(True) + slow.finalize() + ["L_code_end:"]

hdr = open("cdna_kernels/" + NAME + ".s.ref").read().split("; Override launch")[0]
o = [hdr.rstrip(), "; @launch grid=(256,1,1) block=(256,1,1) lds=163840", '.amdgcn_target "amdgcn-amd-amdhsa--gfx950"\n.text',
     f".globl {KN}\n.p2align 8\n.type {KN},@function\n{KN}:"]
o += [("" if l.endswith(":") else "    ") + l for l in body]
o.append("    s_endpgm")
o.append(f""".section .rodata,"a"
.p2align 6
.amdhsa_kernel {KN}
  .amdhsa_next_free_vgpr 512
  .amdhsa_next_free_sgpr 102
  .amdhsa_accum_offset 256
  .amdhsa_group_segment_fixed_size 0
  .amdhsa_kernarg_size 120
  .amdhsa_user_sgpr_count 2
  .amdhsa_user_sgpr_kernarg_segment_ptr 1
  .amdhsa_system_sgpr_workgroup_id_x 1
.end_amdhsa_kernel""")
open(sys.argv[1], "w").write("\n".join(o) + "\n")
```

```python
import sys
from asmlib import *

NAME = "gated_mix__ssm_conv_s4d__glu_gated_swiglu__prompt"
KN = NAME + "_kernel"
OPT = {a.split("=")[0]: (a.split("=") + ["1"])[1] for a in sys.argv[2:]}
def opt(k, d): return int(OPT.get(k, d))
STAMPS = "ts" in OPT
H_OFF, W2T_OFF, U4T_OFF, A2_OFF, G_OFF, F1_OFF, F2_OFF, TS_OFF, WS_USED = 0x10000, 0x720000, 0x900000, 0xB00000, 0xF00000, 0xF20000, 0xF40000, 0xF80000, 0x1000000
KS, KSW = 0, 8704
KB, KBC = 28928, 4160
UB, UBC = 37248, 4608
TIN = 37248
W2S = TIN + 8192
KX = 37248
WSLOTS = [56832, 85760, 0]
W3OFF = 14464
XR, XSLOT = 114688, 16384
EX = 114688
RB = 114688
LOG2E, NLOG2E, INV2PI = 0x3fb8aa3b, 0xbfb8aa3b, 0x3e22f983
SC = " sc1"
SPIN_MAX = 200000
BIG = 0x40000000
V_WOFF, V_8x128, V_XOFF, V_XRD, V_WRD, V_KF, V_UF, V_L16, V_T0, V_L0 = 16, 23, 24, 28, 32, 35, 36, 37, 38, 39
V_ZERO, V_NL, V_NONCE, V_TS = 40, 41, 42, 43
ACC1 = 128
WF = [64, 96]; XF = [92, 124]
A_W2, A_KF, A_UF = 0, 112, 176
S_NONCE = 35

p = Prog(); slow = Prog()
nstamp = 0
def stamp(name, pp=None):
    global nstamp
    if not STAMPS: return
    pp = pp or p
    i = nstamp; nstamp += 1
    pp("s_memtime s[96:97]\ns_memrealtime s[98:99]\ns_waitcnt lgkmcnt(0)")
    pp(f"v_writelane_b32 v{V_TS}, s96, {2*i}\nv_writelane_b32 v{V_TS}, s98, {2*i+1}")
def L(txt): return [l.strip() for l in txt.strip().split("\n") if l.strip()]
def cmul(d, a, b):
    return [f"v_pk_mul_f32 v[{d}:{d+1}], v[{a}:{a+1}], v[{b}:{b+1}] op_sel:[0,0] op_sel_hi:[1,0]",
            f"v_pk_fma_f32 v[{d}:{d+1}], v[{a}:{a+1}], v[{b}:{b+1}], v[{d}:{d+1}] op_sel:[1,1,0] op_sel_hi:[0,1,1] neg_lo:[1,0,0]"]
tk = {}
def mark(name):
    def f(pp): tk[name] = pp.mark()
    return f
def waitvm(name):
    return lambda pp: pp.wait_vm(tk[name])

def dma_bundles(st):
    slot = st % 3
    b = []
    for j in range(4):
        pre = [f"s_add_u32 m0, s70, {slot * XSLOT}", f"s_xor_b32 s73, s27, {st * 128}"] if j == 0 else []
        b.append(pre + [f"buffer_load_dwordx4 v{V_XOFF+j}, s[4:7], s73 offen offset:{1024*j} lds"])
    for j in range(7):
        pre = []
        if j == 0: pre = [f"s_add_u32 m0, s71, {WSLOTS[slot]}", f"s_add_u32 s74, {'s72' if st < 4 else 's3'}, {(st & 3) * 64 * 3584}"]
        if j == 4: pre = [f"s_add_u32 m0, s71, {WSLOTS[slot] + 4096}", "s_nop 0"]
        b.append(pre + [f"buffer_load_dwordx4 v{V_WOFF+j}, s[8:11], s74 offen offset:{1024*(j%4)} lds"])
    b[-1] = b[-1] + [mark(f"D{st}")]
    return b

def frag_reads(q):
    st, s = q >> 2, q & 3
    slot = st % 3; b = q & 1
    o = [f"ds_read_b128 v[{XF[b]}:{XF[b]+3}], v{V_XRD+s} offset:{slot * XSLOT}"]
    for t in range(7):
        for h in range(2):
            r = WF[b] + 4 * t + 2 * h
            o.append(f"ds_read_b64_tr_b16 v[{r}:{r+1}], v{V_WRD+slot} offset:{(16*s + 4*h) * 224 + 32*t}")
    return o

class Gaps:
    def __init__(self, n): self.g = [[] for _ in range(n)]
    def put(self, i, items): self.g[i] += items
    def spread(self, bundles, g0, g1):
        n = len(bundles)
        for k, b in enumerate(bundles):
            i = g0 + (k * (g1 - g0)) // n
            self.g[i] += b if isinstance(b, list) else [b]
def chunks(lst, n): return [lst[i:i+n] for i in range(0, len(lst), n)]

npoll = 0
def poll_check(reload_lines, combine_lines, cmp_line):
    global npoll
    k = npoll; npoll += 1
    def f(pp):
        for l in combine_lines: pp(l)
        pp(cmp_line)
        pp(f"s_cbranch_vccnz L_slow{k}")
        pp(f"L_back{k}:")
    slow(f"L_slow{k}:\ns_mov_b32 s95, 0\nL_slowloop{k}:")
    for l in reload_lines: slow(l)
    slow("s_waitcnt vmcnt(0)")
    for l in combine_lines: slow(l)
    slow(f"""s_add_u32 s95, s95, 1
             s_cmp_ge_u32 s95, {SPIN_MAX}
             s_cbranch_scc1 L_back{k}
             {cmp_line}
             s_cbranch_vccnz L_slowloop{k}
             s_branch L_back{k}""")
    return f

p("s_cmp_ge_u32 s2, 256\ns_cbranch_scc1 L_end")
p("""s_load_dwordx16 s[36:51], s[0:1], 0
     s_load_dwordx8 s[52:59], s[0:1], 64
     s_load_dwordx4 s[60:63], s[0:1], 96
     s_load_dwordx2 s[64:65], s[0:1], 112
     s_memrealtime s[76:77]
     s_getpc_b64 s[66:67]
     L_pc:
     v_lshrrev_b32 v2, 6, v0
     v_and_b32 v1, 63, v0
     s_lshr_b32 s30, s2, 3
     v_readfirstlane_b32 s24, v2
     v_lshrrev_b32 v3, 5, v0
     v_lshl_add_u32 v3, s30, 3, v3
     v_min_u32 v3, (L_code_end-L_pc)>>7, v3
     v_lshlrev_b32 v3, 7, v3
     global_load_dword a254, v3, s[66:67]""")
if STAMPS: p(f"v_mov_b32 v{V_TS}, 0")
p(f"""v_lshrrev_b32 v3, 4, v1
     v_bfe_u32 v4, v1, 2, 2
     v_and_b32 v5, 3, v1
     v_lshrrev_b32 v6, 3, v1
     v_and_b32 v7, 7, v1
     v_and_b32 v8, 31, v1
     v_lshrrev_b32 v9, 5, v1
     s_and_b32 s31, s2, 1
     s_bfe_u32 s32, s2, 0x20001
     s_and_b32 s28, s24, 1
     s_lshr_b32 s29, s24, 1
     s_lshl_b32 s25, s31, 3
     s_and_b32 s34, s30, 7
     s_add_u32 s25, s25, s34
     s_lshl_b32 s26, s32, 2
     s_lshr_b32 s27, s30, 3
     s_add_u32 s26, s26, s27
     s_and_b32 s33, s2, 7
     s_lshl_b32 s33, s33, 2
     s_add_u32 s33, s33, s27
     s_lshl_b32 s78, s2, 1
     s_add_u32 s78, s78, s29
     s_lshl_b32 s68, s78, 8
     s_lshl_b32 s69, s28, 7
     s_add_u32 s68, s68, s69
     v_lshl_add_u32 v10, v1, 1, s68
     v_mov_b32 v48, 0
     v_mov_b32 v49, 0
     v_mov_b32 v50, 0
     v_mov_b32 v51, 0
     v_lshlrev_b32 v{V_L16}, 4, v1
     v_lshlrev_b32 v{V_8x128}, 10, v6
     v_lshl_add_u32 v{V_8x128}, v7, 4, v{V_8x128}
     s_lshl_b32 s92, s2, 2""")
p(f"""s_and_b32 s79, s30, 15
     s_lshl_b32 s68, s31, 4
     s_add_u32 s79, s79, s68
     s_lshr_b32 s80, s30, 4
     s_lshl_b32 s68, s32, 1
     s_add_u32 s80, s80, s68
     s_lshl_b32 s81, s79, 16
     s_lshl_b32 s68, s24, 14
     s_add_u32 s81, s81, s68
     s_lshl_b32 s68, s80, 7
     s_add_u32 s81, s81, s68
     s_add_u32 s82, s81, {8192-1024}
     s_add_u32 s83, s92, s24
     s_sub_u32 s69, s83, 128
     s_cmp_lt_u32 s83, 896
     s_cselect_b32 s83, s83, s69
     s_mul_i32 s68, s83, 2341
     s_lshr_b32 s68, s68, 18
     s_mul_i32 s69, s68, 112
     s_sub_u32 s69, s83, s69
     s_lshl_b32 s85, s69, 14
     s_lshl_b32 s68, s68, 7
     s_add_u32 s85, s85, s68
     s_add_u32 s86, s85, {8192-1024}
     s_lshl_b32 s89, s24, 11
     s_add_u32 s90, s89, {W2S}
     s_add_u32 s89, s89, {TIN}""")
WPF = opt("wpf", 1)
p(("v_and_b32 v11, 3, v6\nv_mul_u32_u24 v11, 0x1c00, v11" if WPF == 1 else "v_mul_u32_u24 v11, 0xe00, v6") + """
     v_min_u32 v12, 6, v7
     v_lshl_add_u32 v11, v12, 7, v11
     s_lshl_b32 s68, s30, 1
     s_add_u32 s68, s68, s29
     s_lshl_b32 s68, s68, 3""" + ("\ns_add_u32 s68, s68, s31" if WPF == 1 else "") + """
     s_mul_i32 s91, s68, 3584
     s_mul_i32 s68, s32, 896
     s_add_u32 s91, s91, s68""")
stamp("pre-kernarg")
p("s_waitcnt lgkmcnt(0)")
p(f"""global_load_short_d16_hi v48, v10, s[38:39]
     global_load_short_d16_hi v49, v10, s[40:41]
     global_load_short_d16_hi v50, v10, s[42:43]
     global_load_short_d16_hi v51, v10, s[44:45]
     s_load_dword s93, s[46:47], s92
     s_load_dword s94, s[48:49], s92
     s_mov_b32 s4, s36
     s_mov_b32 s5, s37
     s_mov_b32 s6, 0x200000
     s_mov_b32 s7, 0x20000
     s_mov_b32 m0, s89
     s_mov_b32 s16, s56
     s_mov_b32 s17, s57
     s_mov_b32 s18, {1792*1024}
     s_mov_b32 s19, 0x20000
     s_cmp_eq_u32 s28, 0
     s_cselect_b32 s8, s52, s54
     s_cselect_b32 s9, s53, s55
     s_mov_b32 s10, {512*3584}
     s_mov_b32 s11, 0x20000
     s_barrier
     buffer_load_dword a255, v11, s[8:11], s91 offen
     buffer_load_dwordx4 v{V_8x128}, s[4:7], s81 offen lds
     buffer_load_dwordx4 v{V_8x128}, s[4:7], s82 offen offset:1024 lds
     s_mov_b32 m0, s90
     s_mov_b32 s12, s64
     buffer_load_dwordx4 v{V_8x128}, s[16:19], s85 offen lds
     buffer_load_dwordx4 v{V_8x128}, s[16:19], s86 offen offset:1024 lds""")
p(f"""s_mov_b32 s13, s65
      s_mov_b32 s14, {WS_USED}
      s_mov_b32 s15, 0x20000
      s_mov_b32 s20, s60
      s_mov_b32 s21, s61
      s_mov_b32 s22, 0x200000
      s_mov_b32 s23, 0x20000
      v_mov_b32 v12, {BIG:#x}
      v_cmp_eq_u32 vcc, 0, v0
      s_mov_b32 s16, s62
      s_mov_b32 s17, s63
      v_cndmask_b32 v{V_T0}, v12, 0, vcc
      v_cmp_eq_u32 vcc, 0, v1
      s_mov_b32 s18, 256
      s_or_b32 s76, s76, 1
      v_cndmask_b32 v{V_L0}, v12, 0, vcc
      v_mov_b32 v13, s76
      s_lshl_b32 s68, s2, 10
      buffer_store_dword v13, v{V_T0}, s[16:19], s68 offen{SC}""")
p("s_movk_i32 s68, 4682")
for j in range(7):
    p(f"""v_add_u32 v12, {64*j}, v1
          v_mul_u32_u24 v13, s68, v12
          v_lshrrev_b32 v13, 16, v13
          v_mul_u32_u24 v13, {3584 - 224}, v13""")
    if j // 4: p(f"v_add_u32 v13, 4096, v13")
    p(f"v_add_u32 v{V_WOFF+j}, v13, v{V_L16}")
p(f"""s_lshl_b32 s68, s25, 7
      s_lshl_b32 s69, s24, 5
      s_add_u32 s68, s68, s69
      s_lshl_b32 s68, s68, 10
      v_lshrrev_b32 v12, 1, v6
      v_xor_b32 v12, v12, v7
      v_lshlrev_b32 v12, 4, v12
      v_lshl_add_u32 v12, v6, 10, v12
      v_add_u32 v{V_XOFF}, s68, v12
      v_xor_b32 v{V_XOFF+1}, 64, v{V_XOFF}
      v_add_u32 v{V_XOFF+1}, {8192-1024}, v{V_XOFF+1}
      v_add_u32 v{V_XOFF+2}, {2*(8192-1024)}, v{V_XOFF}
      v_add_u32 v{V_XOFF+3}, {2*(8192-1024)}, v{V_XOFF+1}
      s_lshl_b32 s70, s24, 12
      s_add_u32 s70, s70, {XR}
      s_mul_i32 s71, s28, {W3OFF}
      s_mul_i32 s68, s29, 7168
      s_add_u32 s71, s71, s68
      s_mul_i32 s72, s29, {32*3584}
      s_mul_i32 s68, s26, 224
      s_add_u32 s72, s72, s68
      s_xor_b32 s27, s25, s26
      s_and_b32 s27, s27, {opt("rot1", 1)}
      s_mul_i32 s68, s27, {256*3584}
      s_sub_u32 s3, {256*3584}, s68
      s_add_u32 s3, s3, s72
      s_add_u32 s72, s72, s68
      s_lshl_b32 s27, s27, 9
      v_bfe_u32 v11, v8, 1, 3
      v_xor_b32 v11, v11, v9
      v_lshlrev_b32 v11, 4, v11
      v_lshl_add_u32 v11, v8, 7, v11
      v_add_u32 v{V_XRD}, s70, v11""")
for s in range(1, 4): p(f"v_xor_b32 v{V_XRD+s}, {32*s}, v{V_XRD}")
p(f"""v_and_b32 v11, 1, v3
      v_bfe_u32 v12, v5, 1, 1
      v_and_b32 v13, 1, v5
      v_lshl_add_u32 v13, v13, 1, v11
      v_mul_u32_u24 v12, {W3OFF}, v12
      v_lshl_add_u32 v12, v13, 3, v12
      v_lshl_add_u32 v13, v9, 3, v4
      v_mul_u32_u24 v14, 224, v13
      v_add_u32 v{V_WRD+2}, v12, v14
      v_add_u32 v{V_WRD}, {WSLOTS[0]}, v{V_WRD+2}
      v_add_u32 v{V_WRD+1}, {WSLOTS[1]}, v{V_WRD+2}
      v_lshl_add_u32 v12, v11, 2, v5
      v_lshrrev_b32 v14, 1, v12
      v_and_b32 v15, 1, v12
      v_lshlrev_b32 v15, 5, v15
      v_lshl_add_u32 v15, v14, 3, v15
      v_lshl_add_u32 v15, v13, 7, v15
      v_add_u32 v44, s90, v15
      s_mul_i32 s75, s29, {KBC}
      s_add_u32 s75, s75, {KB}
      v_sub_u32 v12, v12, v13
      s_lshl_b32 s68, s28, 7
      s_add_u32 s69, s68, s75
      s_add_u32 s69, s69, 96
      v_lshl_add_u32 v{V_KF}, v12, 3, s69
      s_mul_i32 s77, s29, {UBC}
      s_add_u32 s77, s77, {UB}
      v_lshlrev_b32 v12, 4, v8
      v_lshl_add_u32 v12, v9, 6, v12
      s_sub_u32 s68, s77, s68
      s_add_u32 s68, s68, 192
      v_add_u32 v{V_UF}, s68, v12
      v_lshl_add_u32 v12, v4, 2, v3
      v_lshlrev_b32 v12, 7, v12
      v_lshl_add_u32 v12, v5, 3, v12
      s_lshl_b32 s68, s24, 5
      s_add_u32 s68, s68, {TIN}
      v_add_u32 v45, s68, v12
      v_and_b32 v12, 15, v1
      v_xor_b32 v13, v3, v7
      v_lshlrev_b32 v13, 4, v13
      v_lshl_add_u32 v13, v12, 7, v13
      v_add_u32 v46, s90, v13
      v_xor_b32 v10, 64, v46
      v_xor_b32 v13, v6, v7
      v_lshlrev_b32 v13, 4, v13
      v_lshl_add_u32 v13, v6, 7, v13
      v_add_u32 v47, s90, v13
      v_lshlrev_b32 v11, 12, v6
      v_lshl_add_u32 v11, v7, 4, v11
      s_lshl_b32 s81, s80, 18
      s_lshl_b32 s82, s24, 16
      s_add_u32 s81, s81, s82
      s_lshl_b32 s82, s79, 7
      s_add_u32 s81, s81, s82
      s_add_u32 s81, s81, {U4T_OFF}
      s_add_u32 s82, s81, 32768
      s_lshl_b32 s83, s83, 11
      s_add_u32 s83, s83, {W2T_OFF}
      v_mov_b32 v{V_ZERO}, 0
      s_mul_i32 s76, s24, {KSW}
      v_mul_u32_u24 v15, 272, v8
      v_lshl_add_u32 v15, v9, 4, v15
      v_add_u32 v15, s76, v15
      s_waitcnt lgkmcnt(0)
      s_lshl_b32 s68, s29, 4
      s_lshr_b32 s93, s93, s68
      s_lshl_b32 s93, s93, 16
      s_lshr_b32 s94, s94, s68
      s_lshl_b32 s94, s94, 16""")
assert W2S % 128 == 0 and XR % 128 == 0 and WSLOTS[2] == 0 and KS == 0
stamp("setup done")
p(f"v_mov_b32 v52, s93\nv_mul_f32 v52, {LOG2E:#x}, v52\nv_exp_f32 v52, v52")
p.touch("v[48:51]")
stamp("params landed")
C0, E1, E8, E256 = 64, 66, 68, 70
p(f"""v_mul_f32 v48, {LOG2E:#x}, v48
      v_exp_f32 v48, v48
      v_cvt_pk_bf16_f32 v53, v52, v48
      v_lshlrev_b32 v52, 16, v53
      v_and_b32 v48, 0xffff0000, v53
      v_mul_f32 v48, v48, v52
      v_mul_f32 v49, v49, v52
      v_mul_f32 v48, {NLOG2E:#x}, v48
      v_mul_f32 v49, {INV2PI:#x}, v49
      v_add_f32 v52, v52, v52
      v_mul_f32 v56, 0x41000000, v48
      v_mul_f32 v57, 0x41000000, v49
      v_exp_f32 v56, v56
      v_fract_f32 v57, v57
      v_mul_f32 v60, 0x43800000, v48
      v_cos_f32 v58, v57
      v_sin_f32 v59, v57
      v_mul_f32 v61, 0x43800000, v49
      v_mul_f32 v{E8}, v56, v58
      v_mul_f32 v{E8+1}, v56, v59
      v_exp_f32 v60, v60
      v_fract_f32 v61, v61
      v_exp_f32 v48, v48
      v_fract_f32 v49, v49
      v_cos_f32 v62, v61
      v_sin_f32 v63, v61
      v_cos_f32 v54, v49
      v_sin_f32 v55, v49
      v_mul_f32 v{C0}, v50, v52
      v_mul_f32 v{C0+1}, v51, v52
      v_mul_f32 v{E256}, v60, v62
      v_mul_f32 v{E256+1}, v60, v63
      v_mul_f32 v{E1}, v48, v54
      v_mul_f32 v{E1+1}, v48, v55""")
D0 = dma_bundles(0); D1 = dma_bundles(1)
pre_dma = D0 + D1
NEARLY = opt("early", 0)
TB = [48, 56]
A_YF, A_XF = 112, 144
def flush(batch):
    p("s_mov_b32 m0, s76")
    for (reg, row) in batch: p(f"ds_write_addtid_b32 v{reg} offset:{272*row}")
groups = [D0[0:4], D0[4:8], D0[8:11], D1[0:4], D1[4:8], D1[8:11]]
def after_batch(k):
    if k >= 8 - NEARLY and groups:
        for b in groups.pop(0):
            for i in b: p.add(i)
cur = E8; ping = [128, 130]
for bt in range(4):
    T = TB[bt & 1]; batch = []
    for jj in range(8):
        j = 8 * bt + jj
        if j == 0: p(f"v_mov_b32 v{T}, 0x3f80")
        elif j == 1: p(f"v_cvt_pk_bf16_f32 v{T+1}, v{E8}, v{E8+1}")
        else:
            d = ping[j & 1]
            for i in cmul(d, cur, E8): p(i)
            p(f"v_cvt_pk_bf16_f32 v{T+jj}, v{d}, v{d+1}")
            cur = d
        batch.append((T + jj, j))
    flush(batch)
    if bt == 3:
        for s in range(8): p(f"ds_read_b128 a[{A_YF+4*s}:{A_YF+4*s+3}], v15 offset:{32*s}")
    after_batch(bt)
rows = {}
lists = [[0,1,2,3, 256,258,260,None, 512,516,520,None, 1024,1032,1280,1288],
         [4,5,6,7, 260,262,264,None, 768,772,776,None, 1536,1544,1792,1800]]
for hh in range(2):
    for k, pos in enumerate(lists[hh]):
        if pos is not None: rows.setdefault(pos, []).append(8 * (k >> 2) + 4 * hh + (k & 3))
xr = {0: C0}
seq = [(0, None, None)]
for pos in range(1, 9): seq.append((pos, pos - 1, E1))
for base in range(256, 2048, 256):
    offs = (0, 2, 4, 6, 8) if base == 256 else ((0, 4, 8) if base < 1024 else (0, 8))
    for o in offs: seq.append((base + o, base - 256 + o, E256))
free = list(range(132, 200, 2))
batch = []; nb = 0; cnt = 0
for idx, (pos, src, e) in enumerate(seq):
    if src is not None:
        d = free.pop(0); xr[pos] = d
        for i in cmul(d, xr[src], e): p(i)
    if pos in rows:
        T = TB[nb & 1] + cnt; cnt += 1
        p(f"v_cvt_pk_bf16_f32 v{T}, v{xr[pos]}, -v{xr[pos]+1}")
        for m in rows[pos]: batch.append((T, m))
    if cnt == 7 or idx == len(seq) - 1:
        flush(batch); batch = []; cnt = 0
        if idx == len(seq) - 1:
            for s in range(8): p(f"ds_read_b128 a[{A_XF+4*s}:{A_XF+4*s+3}], v15 offset:{32*s}")
        after_batch(4 + nb); nb += 1
stamp("chains done")
KD = 240
kmf = [f"v_mfma_f32_32x32x16_bf16 v[{KD}:{KD+15}], a[{A_XF+4*s}:{A_XF+4*s+3}], a[{A_YF+4*s}:{A_YF+4*s+3}], {'0' if s == 0 else f'v[{KD}:{KD+15}]'}" for s in range(8)]
rest = [b for g in groups for b in g]
NPRE = opt("npre", 22)
done = 22 - len(rest)
k = 0
while done < max(NPRE, 11):
    for i in rest.pop(0): p.add(i)
    done += 1
    if k < 8: p(kmf[k]); k += 1
while k < 8: p(kmf[k]); k += 1
stamp("pre-G1 DMA issued")
p("s_waitcnt lgkmcnt(0)")
p.wait_vm(tk["D0"])
p("s_barrier")
stamp("G1 start")
G = Gaps(224)
def sg(st, a=0): return 28 * st + a
D2 = rest + dma_bundles(2)
G.spread(D2, 0, 23 + (5 if rest else 0))
for st in range(3, 8):
    lo = sg(st - 3, 23) + (5 if (st == 3 and rest) else 0)
    G.spread(dma_bundles(st), lo, sg(st - 2, 23))
p1a = [f"ds_read_b64_tr_b16 v[{48+blk*4+h*2}:{49+blk*4+h*2}], v45 offset:{(32*blk + 16*h) * 128}" for blk in range(2) for h in range(2)]
p1a += [f"ds_read_b64_tr_b16 v[{56+t*4+h*2}:{57+t*4+h*2}], v44 offset:{4*h*128 + 64*t}" for t in range(2) for h in range(2)]
G.spread(p1a, 1, 9)
G.put(11, ["ds_write_b128 v46, v[48:51]"]); G.put(13, ["ds_write_b128 v10, v[52:55]"])
G.put(15, ["ds_read_b128 v[48:51], v47"]); G.put(16, ["ds_read_b128 v[52:55], v47 offset:1024"])
P1G = opt("p1g", 19)
G.spread([f"buffer_store_dwordx4 v[56:59], v{V_L16}, s[12:15], s83 offen{SC}",
          f"buffer_store_dwordx4 v[60:63], v{V_L16}, s[12:15], s83 offen offset:1024{SC}",
          f"buffer_store_dwordx4 v[48:51], v11, s[12:15], s81 offen{SC}",
          f"buffer_store_dwordx4 v[52:55], v11, s[12:15], s82 offen{SC}",
          [f"global_load_dword v{V_NL}, v{V_ZERO}, s[62:63]{SC}", mark("P1")]], P1G, P1G + 10)
G.put(sg(1, 0), L(f"""s_lshl_b32 s68, s24, 12
                      s_add_u32 s68, s68, {KX}
                      v_add_u32 v14, s68, v{V_L16}"""))
G.spread([f"ds_write_b128 v14, v[{KD+4*i}:{KD+4*i+3}] offset:{1024*i}" for i in range(4)], sg(1, 3), sg(1, 19))
G.put(sg(1, 20), L(f"""s_xor_b32 s68, s24, 1
                       s_lshl_b32 s68, s68, 12
                       s_add_u32 s68, s68, {KX}
                       v_add_u32 v14, s68, v{V_L16}"""))
G.spread([f"ds_read_b128 v[{48+4*i}:{51+4*i}], v14 offset:{1024*i}" for i in range(4)], sg(2, 0), sg(2, 4))
kx = L("""v_lshl_add_u32 v12, v8, 4, s75
          v_lshl_add_u32 v13, v9, 3, v12
          v_lshl_add_u32 v14, v9, 9, v12
          v_lshl_add_u32 v15, v9, 10, v12
          v_cmp_eq_u32 vcc, 0, v1
          v_mov_b32 v10, s94
          v_and_b32 v11, 1, v1
          v_cndmask_b32 v10, 0, v10, vcc
          v_cmp_eq_u32 vcc, 1, v11""")
kx += [f"v_add_f32 v{KD+i}, v{KD+i}, v{48+i}" for i in range(16) if i not in (7, 11)]
k_ = lambda i: f"v{KD+i}"
kx += L(f"""v_add_f32 {k_(0)}, {k_(0)}, v10
      v_cvt_pk_bf16_f32 v49, {k_(2)}, {k_(3)}
      v_cvt_pk_bf16_f32 v48, {k_(0)}, {k_(1)}
      v_cvt_pk_bf16_f32 v50, {k_(4)}, {k_(4)}
      v_cvt_pk_bf16_f32 v51, {k_(5)}, {k_(6)}
      v_cvt_pk_bf16_f32 v52, {k_(8)}, {k_(8)}
      v_cvt_pk_bf16_f32 v53, {k_(8)}, {k_(9)}
      v_cvt_pk_bf16_f32 v54, {k_(9)}, {k_(9)}
      v_cvt_pk_bf16_f32 v55, {k_(10)}, {k_(10)}""")
for b in range(2):
    v, vn = k_(12 + 2*b), k_(13 + 2*b); r = 56 + 4*b
    kx += L(f"""v_cndmask_b32 v12, {v}, {vn}, vcc
          v_cvt_pk_bf16_f32 v{r}, {v}, {v}
          v_cvt_pk_bf16_f32 v{r+1}, {v}, {v}
          v_cvt_pk_bf16_f32 v{r+2}, v12, {vn}
          v_cvt_pk_bf16_f32 v{r+3}, {vn}, {vn}""")
G.spread(chunks(kx, 2), sg(2, 5), sg(3, 0))
kw = [f"ds_write_b64 v13, v[48:49] offset:64", f"ds_write_b64 v13, v[50:51] offset:{64+512}", f"ds_write_b128 v14, v[52:55] offset:{64+1024}",
      f"ds_write_b128 v15, v[56:59] offset:{64+2048}", f"ds_write_b128 v15, v[60:63] offset:{64+2048+512}",
      ["v_and_b32 v12, 15, v1", "v_lshl_add_u32 v12, v12, 2, s75", f"ds_write_b32 v12, v{V_ZERO}"],
      ["v_lshl_add_u32 v13, v1, 2, s77", f"ds_write2st64_b32 v13, v{V_ZERO}, v{V_ZERO} offset0:0 offset1:1"]]
G.spread(kw, sg(3, 0), sg(3, 21))
def nonce_check(pp):
    pp(f"v_readfirstlane_b32 s{S_NONCE}, v{V_NL}")
    pp(f"s_cmp_eq_u32 s{S_NONCE}, 0\ns_cbranch_scc1 L_slown\nL_backn:")
slow(f"""L_slown:
         s_mov_b32 s95, 0
         L_slownloop:
         global_load_dword v{V_NL}, v{V_ZERO}, s[62:63]{SC}
         s_waitcnt vmcnt(0)
         v_readfirstlane_b32 s{S_NONCE}, v{V_NL}
         s_add_u32 s95, s95, 1
         s_cmp_ge_u32 s95, {SPIN_MAX}
         s_cbranch_scc1 L_backn
         s_cmp_eq_u32 s{S_NONCE}, 0
         s_cbranch_scc1 L_slownloop
         s_branch L_backn""")
F1B = opt("f1b", 1)
G.put(sg(F1B, 24), [nonce_check, f"v_mov_b32 v{V_NONCE}, s{S_NONCE}"])
G.put(sg(F1B, 26), ["s_lshl_b32 s68, s2, 7", f"s_add_u32 s68, s68, {F1_OFF}", f"buffer_store_dword v{V_NONCE}, v{V_T0}, s[12:15], s68 offen{SC}"])
gl = L(f"""s_lshl_b32 s87, s32, 5
     s_add_u32 s87, s87, s30
     s_lshl_b32 s87, s87, 2
     s_add_u32 s87, s87, s24
     s_lshl_b32 s68, s31, 9
     s_add_u32 s87, s87, s68
     s_lshl_b32 s68, s87, 11""")
G.spread(chunks(gl, 2), sg(3, 1), sg(3, 9))
G.put(sg(3, 11), [f"buffer_load_dwordx4 v[240:243], v{V_L16}, s[4:7], s68 offen"])
G.put(sg(3, 14), [f"buffer_load_dwordx4 v[244:247], v{V_L16}, s[4:7], s68 offen offset:1024"])
G.put(sg(3, 17), [f"global_load_dwordx4 v[248:251], v{V_L16}, s[58:59]"])
gc = ["v_mov_b32 v60, 0", "v_mov_b32 v62, 0"]
for i in range(4): gc += [f"v_dot2_f32_bf16 v60, v{240+i}, v{248+i}, v60", f"v_dot2_f32_bf16 v62, v{244+i}, v{248+i}, v62"]
for sh in ("row_shr:1", "row_shr:2", "row_shr:4", "row_shr:8"):
    gc += [f"v_add_f32_dpp v{r}, v{r}, v{r} {sh} row_mask:0xf bank_mask:0xf bound_ctrl:0" for r in (60, 62)]
gc += [f"v_add_f32_dpp v{r}, v{r}, v{r} row_bcast:15 row_mask:0xa bank_mask:0xf" for r in (60, 62)]
gc += [f"v_add_f32_dpp v{r}, v{r}, v{r} row_bcast:31 row_mask:0xc bank_mask:0xf" for r in (60, 62)]
gc += L(f"""v_cvt_pk_bf16_f32 v61, v60, v62
     v_cmp_eq_u32 vcc, 63, v1
     v_lshlrev_b32 v60, 16, v61
     v_and_b32 v62, 0xffff0000, v61
     v_mul_f32 v60, {NLOG2E:#x}, v60
     v_mul_f32 v62, {NLOG2E:#x}, v62
     v_exp_f32 v60, v60
     v_exp_f32 v62, v62
     v_add_f32 v60, 1.0, v60
     v_add_f32 v62, 1.0, v62
     v_rcp_f32 v60, v60
     v_rcp_f32 v62, v62
     v_cvt_pk_bf16_f32 v61, v60, v62
     v_mov_b32 v59, {BIG:#x}
     v_lshlrev_b32 v60, 16, v61
     v_and_b32 v62, 0xffff0000, v61
     v_cndmask_b32 v59, v59, 0, vcc
     v_mov_b32 v61, v{V_NONCE}
     v_mov_b32 v63, v{V_NONCE}
     s_lshl_b32 s87, s87, 7
     s_add_u32 s87, s87, {G_OFF}""")
G.spread(chunks(gc, 2), sg(4, 22), sg(5, 22))
f1_ld = f"buffer_load_dword v44, v45, s[12:15], s84 offen{SC}"
f1s = L(f"""s_mov_b32 s84, {F1_OFF}
    s_lshr_b32 s68, s78, 6
    s_and_b32 s69, s68, 1
    s_lshl_b32 s69, s69, 7
    s_and_b32 s68, s68, 6
    s_add_u32 s68, s68, s69
    v_and_b32 v45, 15, v1
    v_lshl_add_u32 v46, v45, 3, v3
    v_add_u32 v46, s68, v46
    s_mul_i32 s68, s34, 28
    s_mul_i32 s69, s24, 7
    s_add_u32 s68, s68, s69
    v_min_u32 v47, 6, v45
    v_add_u32 v47, s68, v47
    v_cmp_eq_u32 vcc, 1, v9
    s_lshl_b32 s79, s33, 6
    s_lshl_b32 s69, s29, 5
    v_cndmask_b32 v46, v46, v47, vcc
    v_lshlrev_b32 v45, 7, v46
    s_add_u32 s79, s79, s69""")
G.spread(chunks(f1s, 2), sg(3, 22), sg(4, 6))
G.put(sg(4, 8), [f1_ld])
V_W2A, V_W2B, V_HA, V_HB = 10, 11, 12, 13
ROT2 = opt("rot2", 1)
w2s = L(f"""s_mul_i32 s80, s34, 112
    s_mul_i32 s81, s24, 28
    s_and_b32 s93, s34, {ROT2}
    s_mul_i32 s93, s93, 14
    s_add_u32 s81, s81, s93
    s_add_u32 s80, s80, s81
    s_lshl_b32 s80, s80, 11
    s_add_u32 s80, s80, {W2T_OFF}
    s_lshl_b32 s93, s93, 11
    s_lshl_b32 s68, s28, 10
    v_add_u32 v{V_W2A}, s68, v{V_L16}
    v_xor_b32 v{V_W2B}, 1024, v{V_W2A}
    s_lshl_b32 s85, s78, 12
    s_lshl_b32 s69, s28, 11
    s_add_u32 s85, s85, s69
    s_add_u32 s85, s85, {U4T_OFF}
    s_add_u32 s86, s69, s77
    s_add_u32 s86, s86, 512""")
G.spread(chunks(w2s, 2), sg(4, 9), sg(4, 21))
G.put(sg(5, 23), [poll_check([f1_ld], [], f"v_cmp_ne_u32 vcc, s{S_NONCE}, v44"), "s_mov_b32 m0, s86"])
G.put(sg(5, 24), [f"buffer_load_dwordx4 v{V_L16}, s[12:15], s85 offen{SC} lds"])
G.put(sg(5, 26), [f"buffer_load_dwordx4 v{V_L16}, s[12:15], s85 offen offset:1024{SC} lds", mark("U4")])
w2b = []
for st in range(14):
    for t in range(2):
        r = A_W2 + 8 * st + 4 * t
        pre = ["s_add_u32 s80, s80, 4096"] if (st % 2 == 0 and st and t == 0) else []
        w2b.append(pre + [f"buffer_load_dwordx4 a[{r}:{r+3}], v{V_W2A+t}, s[12:15], s80 offen offset:{2048*(st%2)}{SC}"])
w2b[-1] = w2b[-1] + ["s_add_u32 s80, s80, 4096", "s_sub_u32 s80, s80, s93", "s_sub_u32 s80, s80, s93"]
NW2G1 = opt("nw2g1", 24)
G.spread(w2b[:NW2G1], sg(6, 0), sg(8, 0))
w2b = w2b[NW2G1:]
kf_reads = []
for s in range(16):
    kf_reads.append(f"ds_read_b64_tr_b16 a[{A_KF+4*s}:{A_KF+4*s+1}], v{V_KF} offset:{256*s + 32}")
    kf_reads.append(f"ds_read_b64_tr_b16 a[{A_KF+4*s+2}:{A_KF+4*s+3}], v{V_KF} offset:{256*s}")
uf_reads = [f"ds_read_b128 a[{A_UF+4*s}:{A_UF+4*s+3}], v{V_UF} offset:{256*s}" for s in range(16)]
G.spread(kf_reads[:20], sg(6, 1), sg(6, 21))
G.spread(kf_reads[20:] + uf_reads, sg(7, 0), sg(7, 26))
hs = L(f"""s_lshl_b32 s84, s25, 2
     s_add_u32 s84, s84, s24
     s_mul_i32 s82, s84, 112
     s_mul_i32 s83, s26, 7
     s_add_u32 s82, s82, s83
     s_lshl_b32 s82, s82, 10
     s_add_u32 s82, s82, {H_OFF}
     s_add_u32 s83, s82, 4096
     s_mul_i32 s85, s24, 28672
     s_mov_b32 s90, {NLOG2E:#x}
     s_mov_b32 s91, {NLOG2E:#x}""")
G.spread(hs, sg(7, 1), sg(7, 23))
for i in frag_reads(0): p(i)
for q in range(32):
    st, s = q >> 2, q & 3; b = q & 1
    nxt = frag_reads(q + 1) if q < 31 else []
    for t in range(7):
        if t == 0: p.touch(f"v[{XF[b]}:{XF[b]+3}]", f"v[{WF[b]}:{WF[b]+11}]")
        if t == 3: p.touch(f"v[{WF[b]+12}:{WF[b]+27}]")
        a = ACC1 + 16 * t
        c = "0" if q == 0 else f"v[{a}:{a+15}]"
        p(f"v_mfma_f32_32x32x16_bf16 v[{a}:{a+15}], v[{WF[b]+4*t}:{WF[b]+4*t+3}], v[{XF[b]}:{XF[b]+3}], {c}")
        gi = 7 * q + t
        if s == 3 and q < 31:
            if t <= 1:
                for i in G.g[gi]: p.add(i)
            if t == 1:
                p("s_waitcnt lgkmcnt(0)")
                p.wait_vm(tk[f"D{st+1}"])
                if st == F1B: p.wait_vm(tk["P1"])
                if st == 6: p.wait_vm(tk["U4"])
                p("s_barrier")
                if STAMPS and "allst" in OPT: stamp(f"G1 barrier {st}->{st+1}")
            if t >= 1:
                for _ in range(3):
                    if nxt: p(nxt.pop(0))
            if t >= 2:
                for i in G.g[gi]: p.add(i)
        else:
            for _ in range(3 if t == 0 else 2):
                if nxt: p(nxt.pop(0))
            for i in G.g[gi]: p.add(i)
    assert not nxt
p("s_waitcnt lgkmcnt(0)\ns_barrier")
stamp("G1 end")
w2l = []
for i in range(28):
    it = []
    if i % 4 == 0: it += ([] if i == 0 else ["s_add_u32 s80, s80, 4096"]) + [f"s_add_u32 m0, s85, {1024*i}", "s_nop 0"]
    it.append(f"buffer_load_dwordx4 v{V_L16}, s[12:15], s80 offen offset:{1024*(i%4)}{SC} lds")
    w2l.append(it)
w2l[-1] = w2l[-1] + [mark("W2L")]
vq = w2b + w2l
p(f"buffer_store_dwordx4 v[60:63], v59, s[12:15], s87 offen{SC}")
NC1 = opt("nc1", 1)
for t in range(7):
    a = ACC1 + 16 * t
    T = 64 + 16 * (t & 1); O = T + 8
    gp = [a, a + 2, a + 8, a + 10]; up = [a + 4, a + 6, a + 12, a + 14]
    for i in range(4): p(f"v_pk_mul_f32 v[{T+2*i}:{T+2*i+1}], v[{gp[i]}:{gp[i]+1}], s[90:91]")
    for i in range(8): p(f"v_exp_f32 v{T+i}, v{T+i}")
    for _ in range(NC1):
        if vq:
            for i in vq.pop(0): p.add(i)
    for i in range(4): p(f"v_pk_mul_f32 v[{gp[i]}:{gp[i]+1}], v[{gp[i]}:{gp[i]+1}], v[{up[i]}:{up[i]+1}]")
    for i in range(4): p(f"v_pk_add_f32 v[{T+2*i}:{T+2*i+1}], v[{T+2*i}:{T+2*i+1}], 1.0 op_sel_hi:[1,0]")
    for i in range(8): p(f"v_rcp_f32 v{T+i}, v{T+i}")
    for i in range(4): p(f"v_pk_mul_f32 v[{gp[i]}:{gp[i]+1}], v[{gp[i]}:{gp[i]+1}], v[{T+2*i}:{T+2*i+1}]")
    for i in range(4): p(f"v_cvt_pk_bf16_f32 v{O+i}, v{gp[i]}, v{gp[i]+1}")
    p(f"buffer_store_dwordx4 v[{O}:{O+3}], v{V_L16}, s[12:15], {'s82' if t < 4 else 's83'} offen offset:{1024*(t%4)}{SC}")
    if t == 6: tk["H"] = p.mark()
    for _ in range(NC1):
        if vq and t < 6:
            for i in vq.pop(0): p.add(i)
stamp("C1 end")
CA = [64, 80, 96]
MM = []; tile_end = []
for tau in range(8):
    a = CA[tau % 3]
    for sp in range(2 * tau + 2):
        v2 = 2 * tau - sp + 1
        c = "0" if sp == 0 else f"v[{a}:{a+15}]"
        MM.append(f"v_mfma_f32_32x32x16_bf16 v[{a}:{a+15}], a[{A_UF+4*v2}:{A_UF+4*v2+3}], a[{A_KF+4*sp}:{A_KF+4*sp+3}], {c}")
    tile_end.append(len(MM))
P2 = [112, 113, 114, 115]; P1 = [116, 117, 118, 119]; ZS = 47
dm = "row_mask:0xf bank_mask:0xf"
def shift_add(tau):
    a = CA[tau % 3]; Y = 120 + 4 * (tau & 1); o = []
    z = lambda qd, j: a + 4 * qd + j
    if tau == 0:
        o += [f"v_mov_b32 v{P1[0]}, v{z(0,1)}", f"v_mov_b32 v{Y}, v{z(0,0)}", f"v_mov_b32 v{P2[0]}, v{z(0,2)}"]
    else:
        o += [f"v_add_f32_dpp v{P1[0]}, v{P2[3]}, v{z(0,1)} wave_ror:1 {dm}", f"v_add_f32_dpp v{Y}, v{P1[3]}, v{z(0,0)} wave_ror:1 {dm}",
              f"v_add_f32_dpp v{P2[0]}, v{ZS}, v{z(0,2)} wave_ror:1 {dm}"]
    o += [f"v_add_f32_dpp v{P2[q]}, v{z(q-1,3)}, v{z(q,2)} wave_ror:1 {dm}" for q in range(1, 4)]
    o += [f"v_add_f32_dpp v{P2[q]}, v{z(q,3)}, v{z(q,2)} wave_shr:1 {dm}" for q in range(4)]
    if tau < 7: o += [f"v_mov_b32 v{ZS}, v{z(3,3)}"]
    o += [f"v_add_f32_dpp v{P1[q]}, v{P2[q-1]}, v{z(q,1)} wave_ror:1 {dm}" for q in range(1, 4)]
    o += [f"v_add_f32_dpp v{P1[q]}, v{P2[q]}, v{z(q,1)} wave_shr:1 {dm}" for q in range(4)]
    o += [f"v_add_f32_dpp v{Y+q}, v{P1[q-1]}, v{z(q,0)} wave_ror:1 {dm}" for q in range(1, 4)]
    o += [f"v_add_f32_dpp v{Y+q}, v{P1[q]}, v{z(q,0)} wave_shr:1 {dm}" for q in range(4)]
    o.append(f"ds_write_b128 v14, v[{Y}:{Y+3}] offset:{1024*tau}")
    return o
HR = 128
ACC = [f"v[240:255]", "a[176:191]", "a[192:207]", "a[208:223]"]
A_WL = 112; WLN = 8
def hfr(step, k): return HR + 8 * (step % 14) + 4 * k
def wfr(step, t): return (A_W2 + 8 * step + 4 * t) if step < 14 else (A_WL + 8 * (step % WLN) + 4 * t)
def g2m(s, c):
    t, lt = c & 1, c >> 1
    return f"v_mfma_f32_32x32x16_bf16 {ACC[c]}, a[{wfr(s,t)}:{wfr(s,t)+3}], v[{hfr(s,lt)}:{hfr(s,lt)+3}], {'0' if s == 0 else ACC[c]}"
NDEF = opt("ndef", 7)
g2seq = []
for s in range(28):
    for c in ([0, 1, 2, 3] if s < 28 - NDEF else [1, 2, 3]): g2seq.append((s, c))
for s in range(28 - NDEF, 28): g2seq.append((s, 0))
step_first = {}
for i, (s, c) in enumerate(g2seq): step_first.setdefault(s, 72 + i)
NG = 72 + 112
C = Gaps(NG)
pre = L(f"""s_lshl_b32 s68, s24, 13
    s_add_u32 s68, s68, {EX}
    v_add_u32 v14, s68, v{V_L16}""")
for i in pre: p(i)
cur = 0
for tau in range(8):
    g0 = max(cur, tile_end[tau] + 1)
    n = 6 if tau < 7 else 6
    C.spread(chunks(shift_add(tau), 1), g0, g0 + n)
    cur = g0 + n
    if tau + 2 < 8: assert cur <= tile_end[tau + 2], (tau, cur)
s7_end = cur
F2G, F2P, F2C = opt("f2g", 30), opt("f2p", 50), opt("f2c", 58)
C.spread(vq, 0, F2P)
misc = L(f"""s_lshl_b32 s86, s84, 4
    s_add_u32 s86, s86, s26
    s_lshl_b32 s86, s86, 7
    s_add_u32 s86, s86, {F2_OFF}
    v_and_b32 v15, 1, v4
    v_lshl_add_u32 v15, v15, 4, v5
    v_lshlrev_b32 v15, 7, v15
    s_lshl_b32 s87, s33, 12
    s_lshl_b32 s68, s24, 9
    s_add_u32 s87, s87, s68
    s_add_u32 s87, s87, {F2_OFF}
    s_mul_i32 s88, s33, 224
    s_add_u32 s88, s88, s81
    s_lshl_b32 s88, s88, 10
    s_add_u32 s88, s88, {H_OFF}
    s_mul_i32 s68, s29, {112*1024}
    s_sub_u32 s69, {112*1024}, s68
    v_add_u32 v{V_HA}, s68, v{V_L16}
    v_add_u32 v{V_HB}, s69, v{V_L16}""")
C.put(0, misc[:4]); C.put(1, misc[4:8]); C.put(2, misc[8:11]); C.put(28, misc[11:15]); C.put(29, misc[15:])
C.put(F2G, [waitvm("H"), f"buffer_store_dword v{V_NONCE}, v{V_L0}, s[12:15], s86 offen{SC}"])
f2_ld = f"buffer_load_dword v44, v15, s[12:15], s87 offen{SC}"
C.put(F2P, [f2_ld])
C.put(F2C, [poll_check([f2_ld], [], f"v_cmp_ne_u32 vcc, s{S_NONCE}, v44")] + ([lambda pp: stamp("F2 ok", pp)] if STAMPS else []))
hb = []
for step in range(28):
    for k2 in range(2):
        pre = []
        if k2 == 0 and step % 4 == 0 and step: pre.append("s_add_u32 s88, s88, 4096")
        if k2 == 0 and step == 14: pre.append("s_sub_u32 s88, s88, s93")
        hb.append(pre + [f"buffer_load_dwordx4 v[{hfr(step,k2)}:{hfr(step,k2)+3}], v{V_HA+k2}, s[12:15], s88 offen offset:{1024*(step%4)}{SC}"])
HRATE = float(OPT.get("hrate", 1.5))
for i, b in enumerate(hb):
    step = i // 2
    g = F2C + int(i * HRATE)
    if step >= 14: g = max(g, step_first[step - 13])
    assert g < step_first[step], (i, g)
    C.put(g, b)
ga = s7_end
C.put(ga, L(f"s_lshl_b32 s68, s24, 11\ns_add_u32 s68, s68, {EX}\nv_add_u32 v14, s68, v{V_L16}"))
C.put(ga + 1, ["s_waitcnt lgkmcnt(0)", "s_barrier"])
C.spread([f"ds_read_b128 v[{64+16*tt+4*src}:{67+16*tt+4*src}], v14 offset:{8192*src + 1024*tt}" for tt in range(2) for src in range(4)], ga + 1, ga + 4)
ax = L(f"""s_lshl_b32 s89, s2, 14
    s_lshl_b32 s69, s24, 12
    s_add_u32 s89, s89, s69
    s_add_u32 s89, s89, {A2_OFF}
    v_lshlrev_b32 v14, 3, v1""")
ax += [f"v_mov_b32 v{97+2*i}, v{V_NONCE}" for i in range(8)]
for tt in range(2):
    for qd in range(4):
        r = 64 + 16 * tt + qd
        ax += [f"v_add_f32 v{r}, v{r}, v{r+4}", f"v_add_f32 v{r+8}, v{r+8}, v{r+12}"]
for tt in range(2):
    for qd in range(4):
        r = 64 + 16 * tt + qd
        ax += [f"v_cvt_pk_bf16_f32 v{96+8*tt+2*qd}, v{r}, v{r+8}"]
C.spread(chunks(ax, 4), ga + 4, ga + 14)
C.spread([f"buffer_store_dwordx2 v[{96+2*i}:{97+2*i}], v14, s[12:15], s89 offen offset:{512*i}{SC}" for i in range(8)], ga + 14, ga + 22)
V_W2LA, V_W2LB, V_AO, V_GO, V_OUT = 16, 17, 18, 19, 20
su = L(f"""v_add_u32 v{V_W2LA}, s85, v{V_W2A}
    v_add_u32 v{V_W2LB}, s85, v{V_W2B}
    s_lshl_b32 s90, s34, 5
    s_lshl_b32 s68, s28, 4
    s_add_u32 s90, s90, s68
    s_lshl_b32 s90, s90, 14
    s_lshl_b32 s68, s79, 3
    s_add_u32 s90, s90, s68
    s_add_u32 s90, s90, {A2_OFF}
    v_lshlrev_b32 v{V_AO}, 3, v8
    v_lshl_add_u32 v{V_AO}, v9, 17, v{V_AO}
    v_lshrrev_b32 v{V_GO}, 1, v8
    v_lshlrev_b32 v{V_GO}, 7, v{V_GO}
    v_and_b32 v15, 1, v1
    v_lshl_add_u32 v{V_GO}, v15, 3, v{V_GO}
    s_lshl_b32 s86, s79, 6
    s_add_u32 s86, s86, {G_OFF}
    s_lshl_b32 s91, s79, 10
    s_lshl_b32 s68, s34, 7
    s_add_u32 s91, s91, s68
    s_lshl_b32 s68, s28, 6
    s_add_u32 s91, s91, s68
    v_lshlrev_b32 v{V_OUT}, 10, v8
    v_lshl_add_u32 v{V_OUT}, v9, 5, v{V_OUT}""")
for c in range(4): su += [f"s_xor_b32 s69, s24, {c}", "s_mul_i32 s69, s69, 12288", f"s_add_u32 s69, s69, {RB}", f"v_add_u32 v{24+c}, s69, v{V_L16}"]
for i in range(1, 8): su.append(f"v_add_u32 v{27+i}, {16384*i}, v{V_AO}")
C.spread(chunks(su, 3), ga + 22, ga + 40)
C.put(ga + 41, ["s_barrier"])
for s in range(14, 28):
    g = step_first[s - 2]
    if s >= 14 + WLN: assert s - WLN < 28 - NDEF
    C.put(g, ([waitvm("W2L")] if s == 14 else []) + [f"ds_read_b128 a[{wfr(s,t)}:{wfr(s,t)+3}], v{V_W2LA+t} offset:{2048*(s-14)}" for t in range(2)])
assert ga + 24 < step_first[12]
al = [f"buffer_load_dwordx2 v[{96+2*i}:{97+2*i}], v{V_AO if i == 0 else 27+i}, s[12:15], s90 offen{SC}" for i in range(8)]
al.append(f"buffer_load_dwordx2 v[112:113], v{V_GO}, s[12:15], s86 offen{SC}")
AG = opt("ag", NG - 40)
C.spread(al, AG, AG + 9)
comb = [f"v_xor_b32 v{97+2*i}, v{V_NONCE}, v{97+2*i}" for i in range(9)]
comb += ["v_or3_b32 v97, v97, v99, v101", "v_or3_b32 v103, v103, v105, v107", "v_or3_b32 v109, v109, v111, v113", "v_or3_b32 v97, v97, v103, v109"]
AC = opt("ac", NG - 16)
C.put(AC, [poll_check(al, comb, "v_cmp_ne_u32 vcc, 0, v97")])
gp_ = ["v_sub_f32 v113, 1.0, v112"]
for i in range(8):
    gp_ += [f"v_lshlrev_b32 v{48+2*i}, 16, v{96+2*i}", f"v_and_b32 v{49+2*i}, 0xffff0000, v{96+2*i}",
            f"v_mul_f32 v{48+2*i}, v112, v{48+2*i}", f"v_mul_f32 v{49+2*i}, v112, v{49+2*i}"]
C.spread(chunks(gp_, 4), AC + 1, NG - NDEF + 1)
rbw = [f"ds_write_b128 v{24+c}, a[{160+16*c+4*i}:{163+16*c+4*i}] offset:{4096*(c-1) + 1024*i}" for c in range(1, 4) for i in range(4)]
C.spread(chunks(rbw, 2), NG - NDEF + 1, NG)
allm = MM + [g2m(s, c) for (s, c) in g2seq]
for gi, m in enumerate(allm):
    if gi == 72: stamp("conv end")
    if gi == 72 + 56: stamp("G2 half")
    p(m)
    for i in C.g[gi]: p.add(i)
stamp("G2 end")
p("s_waitcnt lgkmcnt(0)\ns_barrier")
for i in range(4):
    for c in range(3):
        a = 64 + 16 * c + 4 * i
        p(f"ds_read_b128 v[{a}:{a+3}], v24 offset:{4096*c + 1024*i}")
A0 = 240
for i4 in range(4):
    for i in range(4*i4, 4*i4+4, 2):
        p(f"v_pk_add_f32 v[{A0+i}:{A0+i+1}], v[{A0+i}:{A0+i+1}], v[{64+i}:{65+i}]")
        p(f"v_pk_add_f32 v[{80+i}:{81+i}], v[{80+i}:{81+i}], v[{96+i}:{97+i}]")
    for i in range(4*i4, 4*i4+4, 2):
        p(f"v_pk_add_f32 v[{A0+i}:{A0+i+1}], v[{A0+i}:{A0+i+1}], v[{80+i}:{81+i}]")
    for i in range(4*i4, 4*i4+4, 2):
        p(f"v_pk_fma_f32 v[{A0+i}:{A0+i+1}], v[{A0+i}:{A0+i+1}], v[112:113], v[{48+i}:{49+i}] op_sel:[0,1,0] op_sel_hi:[1,1,1]")
    for i in range(2*i4, 2*i4+2):
        p(f"v_cvt_pk_bf16_f32 v{120+i}, v{A0+2*i}, v{A0+2*i+1}")
    if i4 % 2: p(f"buffer_store_dwordx4 v[{120+4*(i4//2)}:{123+4*(i4//2)}], v{V_OUT}, s[20:23], s91 offen offset:{16*(i4//2)}")
if STAMPS:
    stamp("stores issued")
    p("s_waitcnt vmcnt(0)")
    stamp("end")
    p(f"""s_lshl_b32 s68, s2, 2
          s_add_u32 s68, s68, s24
          s_lshl_b32 s68, s68, 8
          s_add_u32 s68, s68, {TS_OFF}
          v_lshlrev_b32 v14, 2, v1
          buffer_store_dword v{V_TS}, v14, s[12:15], s68 offen""")
p("L_end:\ns_endpgm")
body = p.finalize(True) + slow.finalize() + ["L_code_end:"]

hdr = open("cdna_kernels/" + NAME + ".s.ref").read().split("; Override launch")[0]
o = [hdr.rstrip(), "; @launch grid=(256,1,1) block=(256,1,1) lds=163840", '.amdgcn_target "amdgcn-amd-amdhsa--gfx950"\n.text',
     f".globl {KN}\n.p2align 8\n.type {KN},@function\n{KN}:"]
o += [("" if l.endswith(":") else "    ") + l for l in body]
o.append("    s_endpgm")
o.append(f""".section .rodata,"a"
.p2align 6
.amdhsa_kernel {KN}
  .amdhsa_next_free_vgpr 512
  .amdhsa_next_free_sgpr 102
  .amdhsa_accum_offset 256
  .amdhsa_group_segment_fixed_size 0
  .amdhsa_kernarg_size 120
  .amdhsa_user_sgpr_count 2
  .amdhsa_user_sgpr_kernarg_segment_ptr 1
  .amdhsa_system_sgpr_workgroup_id_x 1
.end_amdhsa_kernel""")
open(sys.argv[1], "w").write("\n".join(o) + "\n")
```

```python
import sys
from asmlib import *

NAME = "gated_mix__ssm_conv_s4d__glu_gated_swiglu__prompt"
KN = NAME + "_kernel"
OPT = {a.split("=")[0]: (a.split("=") + ["1"])[1] for a in sys.argv[2:]}
def opt(k, d): return int(OPT.get(k, d))
STAMPS = "ts" in OPT
H_OFF, W2T_OFF, U4T_OFF, A2_OFF, G_OFF, F1_OFF, F2_OFF, TS_OFF, WS_USED = 0x10000, 0x720000, 0x900000, 0xB00000, 0xF00000, 0xF20000, 0xF40000, 0xF80000, 0x1000000
KS, KSW = 0, 8704
KB, KBC = 40832, 4160
WSLOTS = [49152, 81920, 0]
W3OFF = 16384
XR, XSLOT = 114688, 16384
KX = XR + 2 * XSLOT
UB, UBC = XR + 2 * XSLOT, 4608
EX = 114688
RB = 114688
LOG2E, NLOG2E, INV2PI = 0x3fb8aa3b, 0xbfb8aa3b, 0x3e22f983
SC = " sc1"
SPIN_MAX = 200000
OSC = {"0": "", "1": " sc1", "2": " nt", "3": " sc0 sc1", "4": " sc1 nt"}[OPT.get("osc", "0")]
BIG = 0x40000000
V_WOFF, V_XOFF, V_XRD, V_WRA, V_WRB = 16, 20, 24, 28, 32
V_KF, V_UF, V_L16, V_L0, V_ZERO, V_NL, V_NONCE, V_TS = 36, 37, 38, 39, 40, 41, 42, 43
V_W2A, V_W2B, V_HA, V_HB = 10, 11, 12, 13
V_G = 20
V_W2O = 60
STG = 32768
ACC1 = 128
WF = [64, 88]; XF = [80, 104]
A_W2, A_KF, A_UF = 0, 112, 176
S_NONCE = 35

p = Prog(); slow = Prog()
nstamp = 0
ENC = OPT.get("enc", "").replace("_", " ")
def stamp(name, pp=None):
    global nstamp
    if ENC and name == ENC:
        (pp or p)("s_memrealtime s[98:99]\ns_waitcnt lgkmcnt(0)\ns_sub_u32 s101, s98, s100")
    if not STAMPS: return
    if name == "kernarg": return
    if "few" in OPT and name not in ("pre-kernarg", "G1 start", "G1 end", "C1 end", "G2 start", "G2 end", "end"): return
    pp = pp or p
    i = nstamp; nstamp += 1
    pp("s_memtime s[96:97]\ns_memrealtime s[98:99]\ns_waitcnt lgkmcnt(0)")
    pp(f"v_writelane_b32 v{V_TS}, s96, {2*i}\nv_writelane_b32 v{V_TS}, s98, {2*i+1}")
def ST(name): return [lambda pp: stamp(name, pp)] if (STAMPS or ENC) else []
def L(txt): return [l.strip() for l in txt.strip().split("\n") if l.strip()]
def cmul(d, a, b):
    return [f"v_pk_mul_f32 v[{d}:{d+1}], v[{a}:{a+1}], v[{b}:{b+1}] op_sel:[0,0] op_sel_hi:[1,0]",
            f"v_pk_fma_f32 v[{d}:{d+1}], v[{a}:{a+1}], v[{b}:{b+1}], v[{d}:{d+1}] op_sel:[1,1,0] op_sel_hi:[0,1,1] neg_lo:[1,0,0]"]
tk = {}
def mark(name):
    def f(pp): tk[name] = pp.mark()
    return f
def waitvm(name):
    f = lambda pp: pp.wait_vm(tk[name])
    f.cost = 4
    return f
def touch(r):
    f = lambda pp: pp.touch(r)
    f.cost = 4
    return f
def chunks(lst, n): return [lst[i:i+n] for i in range(0, len(lst), n)]
def icost(t):
    if callable(t): return getattr(t, "cost", 0), "s"
    op = t.split()[0]
    if op.endswith(":"): return 0, "s"
    if op.startswith("ds_") or op.startswith(("buffer_", "global_")):
        k = 8
        if op.startswith("ds_write"): k = {"ds_write_b128": 26, "ds_write_b64": 16}.get(op, 12)
        if "store" in op: k = 8 + 4 * {"x4": 4, "x2": 2}.get(op[-2:], 1)
        return k, "m"
    if op.startswith("v_"): return (8 if op in ("v_exp_f32", "v_rcp_f32") else 4), "v"
    if op == "s_nop": return 4 * (int(t.split()[1]) + 1), "s"
    if op == "s_barrier": return 12, "s"
    return 4, "s"
def seqcost(items):
    c = 4; prev = "mfma"
    for t in items:
        k, kind = icost(t)
        if kind == "m":
            if prev == "v": k += 8
            prev = "m"
        elif kind == "v":
            if prev == "mfma": k += 4
            prev = "v"
        elif k and prev == "mfma": prev = "s"
        c += k
    return c
class Gaps:
    def __init__(self, n):
        self.n = n; self.base = [[] for _ in range(n)]; self.mem = [[] for _ in range(n)]; self.alu = [[] for _ in range(n)]
    def items(self, i): return self.mem[i] + self.alu[i]
    def cost(self, i, b=None, ismem=False):
        m, a = self.mem[i], self.alu[i]
        if b is not None:
            if ismem: m = m + b
            else: a = a + b
        return seqcost(self.base[i] + m + a)
    def put(self, i, items):
        ismem = not any(icost(t)[1] == "v" or getattr(t, "alu", False) for t in items)
        (self.mem if ismem else self.alu)[i] += items
    def spread(self, bundles, g0, g1, exact=False):
        n = len(bundles); last = g0; lastalu = False
        for k, b in enumerate(bundles):
            b = b if isinstance(b, list) else [b]
            hasv = any(icost(t)[1] == "v" or getattr(t, "alu", False) for t in b)
            hasm = any(icost(t)[1] == "m" for t in b)
            ismem = hasm and not hasv
            ideal = g0 + (k * (g1 - g0)) // n
            lo = last + (1 if (ismem and lastalu) else 0)
            if exact: i = max(ideal, lo)
            else:
                cand = sorted(range(lo, g1), key=lambda j: (abs(j - ideal), j))
                fit = [j for j in cand if self.cost(j, b, ismem) <= 32 and j <= ideal + 6]
                if fit: i = fit[0]
                elif cand:
                    near = [j for j in cand if j <= ideal + 6] or cand[:1]
                    i = min(near, key=lambda j: (self.cost(j, b, ismem) - max(32, self.cost(j)), abs(j - ideal)))
                else:
                    i = last; ismem = False
            (self.mem if ismem else self.alu)[i] += b
            lastalu = (not ismem) or (lastalu and i == last)
            last = i
        return last

def dma_bundles(st):
    slot = st % 3; b = []
    for j in range(4):
        pre = [f"s_add_u32 m0, s70, {slot * XSLOT}", f"s_xor_b32 s73, s27, {st * 128}"] if j == 0 else []
        b.append(pre + [f"buffer_load_dwordx4 v{V_XOFF+j}, s[4:7], s73 offen offset:{1024*j} lds"])
    for j in range(8):
        pre = []
        if j % 4 == 0: pre = [f"s_add_u32 m0, s71, {WSLOTS[slot] + 1024*j}", f"s_add_u32 s74, {'s72' if st < 4 else 's3'}, {((st & 3) * 64 + 4 * j) * 3584}"]
        b.append(pre + [f"buffer_load_dwordx4 v{V_WOFF+j%4}, s[8:11], s74 offen offset:{1024*(j%4)} lds"])
    b[-1] = b[-1] + [mark(f"D{st}")]
    return b
def frag_reads(q):
    st, s = q >> 2, q & 3
    slot = st % 3; b = q & 1
    x = [f"ds_read_b128 v[{XF[b]+4*lt}:{XF[b]+4*lt+3}], v{V_XRD+s} offset:{slot * XSLOT + 4096*lt}" for lt in range(2)]
    w = []
    for t in range(4):
        base, off = (V_WRB + t, 0) if slot == 2 else (V_WRA + t, 32768 * slot)
        w.append([f"ds_read_b64_tr_b16 v[{WF[b]+4*t+2*h}:{WF[b]+4*t+2*h+1}], v{base} offset:{off + (16*s + 4*h) * 256}" for h in range(2)])
    return [x[0]] + w[0] + [x[1]] + w[1] + w[2] + w[3]

npoll = 0
def poll_check(reload_lines, combine_lines, cmp_line):
    global npoll
    k = npoll; npoll += 1
    def f(pp):
        if STAMPS: pp("s_mov_b32 s95, 0")
        for l in combine_lines: pp(l)
        pp(cmp_line)
        pp(f"s_cbranch_vccnz L_slow{k}")
        pp(f"L_back{k}:")
        if STAMPS: pp(f"v_writelane_b32 v{V_TS}, s95, {58+k}")
    slow(f"L_slow{k}:\ns_mov_b32 s95, 0\nL_slowloop{k}:")
    if opt("sleep", 2): slow(f"s_sleep {opt('sleep', 2)}")
    for l in reload_lines: slow(l)
    slow("s_waitcnt vmcnt(0)")
    for l in combine_lines: slow(l)
    slow(f"""s_add_u32 s95, s95, 1
             s_cmp_ge_u32 s95, {SPIN_MAX}
             s_cbranch_scc1 L_back{k}
             {cmp_line}
             s_cbranch_vccnz L_slowloop{k}
             s_branch L_back{k}""")
    f.cost = 20 + 4 * len(combine_lines); f.alu = True
    return f
nonce_ld = f"global_load_dword v{V_NL}, v{V_ZERO}, s[62:63]{SC}"
nn = 0
def nonce_check():
    global nn
    k = nn; nn += 1
    def f(pp):
        pp(f"v_readfirstlane_b32 s{S_NONCE}, v{V_NL}")
        pp(f"s_cmp_eq_u32 s{S_NONCE}, 0\ns_cbranch_scc1 L_slown{k}\nL_backn{k}:")
        pp(f"v_mov_b32 v{V_NONCE}, s{S_NONCE}")
    slow(f"""L_slown{k}:
         s_mov_b32 s95, 0
         L_slownloop{k}:
         {nonce_ld}
         s_waitcnt vmcnt(0)
         v_readfirstlane_b32 s{S_NONCE}, v{V_NL}
         s_add_u32 s95, s95, 1
         s_cmp_ge_u32 s95, {SPIN_MAX}
         s_cbranch_scc1 L_backn{k}
         s_cmp_eq_u32 s{S_NONCE}, 0
         s_cbranch_scc1 L_slownloop{k}
         s_branch L_backn{k}""")
    f.cost = 28; f.alu = True
    return f

p("s_cmp_ge_u32 s2, 256\ns_cbranch_scc1 L_end")
p(f"""s_load_dwordx16 s[36:51], s[0:1], 0
     s_load_dwordx8 s[52:59], s[0:1], 64
     s_load_dwordx4 s[60:63], s[0:1], 96
     s_load_dwordx2 s[64:65], s[0:1], 112
     s_memrealtime s[76:77]
     s_getpc_b64 s[66:67]
     L_pc:
     v_lshrrev_b32 v2, 6, v0
     v_and_b32 v1, 63, v0
     s_lshr_b32 s30, s2, 3
     v_readfirstlane_b32 s24, v2
     v_lshrrev_b32 v3, 5, v0
     v_lshl_add_u32 v3, s30, 3, v3
     v_min_u32 v3, (L_code_end-L_pc)>>7, v3
     v_lshlrev_b32 v3, 7, v3
     global_load_dword a254, v3, s[66:67]
     v_accvgpr_write_b32 a252, v3""")
if STAMPS: p(f"v_mov_b32 v{V_TS}, 0")
p(f"""s_and_b32 s31, s2, 1
     s_bfe_u32 s32, s2, 0x20001
     s_and_b32 s28, s24, 1
     s_lshr_b32 s29, s24, 1
     s_and_b32 s87, s2, 7
     s_lshl_b32 s87, s87, 5
     s_add_u32 s87, s87, s30
     s_lshl_b32 s78, s87, 1
     s_add_u32 s78, s78, s29
     s_lshl_b32 s68, s78, 8
     s_lshl_b32 s69, s28, 7
     s_add_u32 s68, s68, s69
     v_lshl_add_u32 v10, v1, 1, s68
     v_mov_b32 v48, 0
     v_mov_b32 v49, 0
     v_mov_b32 v50, 0
     v_mov_b32 v51, 0
     s_lshl_b32 s92, s87, 2
     v_and_b32 v8, 31, v1
     s_lshl_b32 s68, s30, 1
     s_add_u32 s68, s68, s29
     v_lshl_add_u32 v11, s68, 5, v8
     s_movk_i32 s69, 9363
     v_mul_u32_u24 v12, s69, v11
     v_lshrrev_b32 v12, 16, v12
     v_mul_u32_u24 v12, {2*3584 - 7*128}, v12
     v_lshl_add_u32 v11, v11, 7, v12
     s_mul_i32 s91, s32, 896
     s_mul_i32 s68, s31, 3584
     s_add_u32 s91, s91, s68
     s_lshl_b32 s68, s30, 2
     s_add_u32 s68, s68, s24
     s_mul_i32 s68, s68, 20
     v_min_u32 v12, 19, v1
     v_add_u32 v12, s68, v12
     v_min_u32 v12, 0x7ff, v12
     v_lshlrev_b32 v12, 7, v12
     s_lshl_b32 s90, s31, 2
     s_add_u32 s90, s90, s32
     s_lshl_b32 s90, s90, 18
     v_lshlrev_b32 v{V_L16}, 4, v1
     v_mov_b32 v{V_ZERO}, 0
     v_lshrrev_b32 v3, 4, v1
     v_bfe_u32 v4, v1, 2, 2
     v_and_b32 v5, 3, v1
     v_lshrrev_b32 v6, 3, v1
     v_and_b32 v7, 7, v1
     v_lshrrev_b32 v9, 5, v1""")
stamp("pre-kernarg")
p("s_waitcnt lgkmcnt(0)")
if ENC: p("s_mov_b32 s100, s76\ns_mov_b32 s101, 0")
stamp("kernarg")
if "tlb" in OPT:
    p("s_load_dword s97, s[60:61], 0\ns_load_dword s97, s[62:63], 128\ns_load_dword s97, s[56:57], 0\ns_load_dword s97, s[58:59], 0".replace("s97", "s96"))
    for k in range(8): p(f"s_mov_b32 s97, {k * 0x200000 + 0x100}\ns_load_dword s96, s[64:65], s97")
p(f"""global_load_short_d16_hi v48, v10, s[38:39]
     global_load_short_d16_hi v49, v10, s[40:41]
     global_load_short_d16_hi v50, v10, s[42:43]
     global_load_short_d16_hi v51, v10, s[44:45]
     s_load_dword s93, s[46:47], s92
     s_load_dword s94, s[48:49], s92
     s_mov_b32 s4, s36
     s_mov_b32 s5, s37
     s_mov_b32 s6, 0x200000
     s_mov_b32 s7, 0x20000
     s_cmp_eq_u32 s28, 0
     s_cselect_b32 s8, s52, s54
     s_cselect_b32 s9, s53, s55
     s_mov_b32 s10, {512*3584}
     s_mov_b32 s11, 0x20000
     s_mov_b32 s12, s64
     s_mov_b32 s13, s65
     s_mov_b32 s14, {WS_USED}
     s_mov_b32 s15, 0x20000
     s_mov_b32 s75, 0
     s_cmp_ge_u32 s30, 28
     s_cbranch_scc1 L_helper
     s_barrier
     buffer_load_dword a255, v11, s[8:11], s91 offen
     buffer_load_dword a253, v12, s[4:7], s90 offen
     L_hjoin:""")
tk["B1"] = p.mark()
p(f"""v_mov_b32 v12, {BIG:#x}
      v_cmp_eq_u32 vcc, 0, v0
      s_mov_b32 s16, s62
      s_mov_b32 s17, s63
      s_mov_b32 s18, 256
      s_mov_b32 s19, 0x20000
      v_cndmask_b32 v14, v12, 0, vcc
      v_cmp_eq_u32 vcc, 0, v1
      s_or_b32 s76, s76, 1
      v_mov_b32 v13, s76
      v_cndmask_b32 v{V_L0}, v12, 0, vcc
      s_lshl_b32 s68, s2, 10
      buffer_store_dword v13, v14, s[16:19], s68 offen{SC}""")
p(f"""s_and_b32 s68, s32, 1
      s_lshl_b32 s68, s68, 2
      s_and_b32 s34, s30, 7
      s_lshr_b32 s69, s30, 3
      s_add_u32 s26, s69, s68
      s_add_u32 s25, s34, s68
      s_cmp_ge_u32 s30, 24
      s_cselect_b32 s26, 3, s26
      s_cselect_b32 s25, s25, s34
      s_lshr_b32 s68, s32, 1
      s_mul_i32 s68, s68, 7
      s_add_u32 s26, s26, s68
      s_lshl_b32 s68, s31, 3
      s_add_u32 s25, s25, s68
      s_and_b32 s33, s2, 7
      s_lshl_b32 s33, s33, 2
      s_add_u32 s33, s33, s69""")
p(f"""v_and_b32 v12, 15, v1
      s_lshl_b32 s68, s28, 1
      v_lshl_add_u32 v13, v3, 2, s68
      v_xor_b32 v13, v13, v12
      v_lshlrev_b32 v13, 4, v13
      v_mul_u32_u24 v14, 0xe00, v3
      v_add_u32 v{V_WOFF}, v13, v14
      v_add_u32 v{V_WOFF+1}, {14336-1024}, v{V_WOFF}
      v_add_u32 v{V_WOFF+2}, {2*(14336-1024)}, v{V_WOFF}
      v_add_u32 v{V_WOFF+3}, {3*(14336-1024)}, v{V_WOFF}
      s_lshl_b32 s68, s25, 7
      s_lshl_b32 s69, s24, 5
      s_add_u32 s68, s68, s69
      s_lshl_b32 s68, s68, 10
      s_add_u32 s68, s68, s75
      v_lshrrev_b32 v13, 1, v6
      v_xor_b32 v13, v13, v7
      v_lshlrev_b32 v13, 4, v13
      v_lshl_add_u32 v13, v6, 10, v13
      v_add_u32 v{V_XOFF}, s68, v13
      v_xor_b32 v{V_XOFF+1}, 64, v{V_XOFF}
      v_add_u32 v{V_XOFF+1}, {8192-1024}, v{V_XOFF+1}
      v_add_u32 v{V_XOFF+2}, {2*(8192-1024)}, v{V_XOFF}
      v_add_u32 v{V_XOFF+3}, {2*(8192-1024)}, v{V_XOFF+1}
      s_lshl_b32 s70, s24, 12
      s_add_u32 s70, s70, {XR}
      s_lshl_b32 s71, s28, 14
      s_lshl_b32 s68, s29, 13
      s_add_u32 s71, s71, s68
      s_mul_i32 s72, s29, {32*3584}
      s_lshl_b32 s68, s26, 8
      s_add_u32 s72, s72, s68
      s_add_u32 s72, s72, s75
      s_xor_b32 s27, s25, s26
      s_and_b32 s27, s27, {opt("rot1", 1)}
      s_mul_i32 s68, s27, {256*3584}
      s_sub_u32 s3, {256*3584}, s68
      s_add_u32 s3, s3, s72
      s_add_u32 s72, s72, s68
      s_lshl_b32 s27, s27, 9
      s_mul_i32 s76, s24, {KSW}
      v_mul_u32_u24 v15, 272, v8
      v_lshl_add_u32 v15, v9, 4, v15
      v_add_u32 v15, s76, v15""")
p(f"""v_bfe_u32 v11, v8, 1, 3
      v_xor_b32 v11, v11, v9
      v_lshlrev_b32 v11, 4, v11
      v_lshl_add_u32 v11, v8, 7, v11
      s_lshl_b32 s68, s29, 13
      s_add_u32 s68, s68, {XR}
      v_add_u32 v{V_XRD}, s68, v11""")
for s in range(1, 4): p(f"v_xor_b32 v{V_XRD+s}, {32*s}, v{V_XRD}")
p(f"""v_and_b32 v11, 1, v3
      v_bfe_u32 v12, v5, 1, 1
      v_and_b32 v13, 1, v5
      v_lshl_add_u32 v13, v13, 1, v11
      v_lshlrev_b32 v13, 3, v13
      v_lshl_add_u32 v13, v12, 14, v13
      v_lshl_add_u32 v12, v4, 1, v12
      s_lshl_b32 s68, s28, 2
      v_xor_b32 v12, s68, v12
      v_lshl_add_u32 v13, v12, 5, v13
      v_lshl_add_u32 v14, v9, 3, v4
      v_lshl_add_u32 v{V_WRB}, v14, 8, v13""")
for t in range(1, 4): p(f"v_xor_b32 v{V_WRB+t}, {32*t}, v{V_WRB}")
for t in range(4): p(f"v_add_u32 v{V_WRA+t}, {WSLOTS[0]}, v{V_WRB+t}")
p(f"""v_lshl_add_u32 v12, v11, 2, v5
      s_mul_i32 s77, s29, {KBC}
      s_add_u32 s77, s77, {KB}
      v_sub_u32 v12, v12, v14
      s_lshl_b32 s68, s28, 7
      s_add_u32 s69, s68, s77
      s_add_u32 s69, s69, 96
      v_lshl_add_u32 v{V_KF}, v12, 3, s69
      s_lshl_b32 s36, s24, 12
      s_add_u32 s36, s36, {KX}
      s_xor_b32 s37, s36, 4096
      s_waitcnt lgkmcnt(0)
      s_lshl_b32 s68, s29, 4
      s_lshr_b32 s93, s93, s68
      s_lshl_b32 s93, s93, 16
      s_lshr_b32 s94, s94, s68
      s_lshl_b32 s94, s94, 16""")
assert KX % 8192 == 0 and WSLOTS[1] == WSLOTS[0] + 32768 and WSLOTS[2] == 0 and KS == 0
stamp("setup done")
def kgen(p, dmas, NEARLY, main):
    p(f"v_mov_b32 v52, s93\nv_mul_f32 v52, {LOG2E:#x}, v52\nv_exp_f32 v52, v52")
    p.touch("v[48:51]")
    if main: stamp("params landed")
    C0, E1, E8, E256 = 64, 66, 68, 70
    p(f"""v_mul_f32 v48, {LOG2E:#x}, v48
          v_exp_f32 v48, v48
          v_cvt_pk_bf16_f32 v53, v52, v48
          v_lshlrev_b32 v52, 16, v53
          v_and_b32 v48, 0xffff0000, v53
          v_mul_f32 v48, v48, v52
          v_mul_f32 v49, v49, v52
          v_mul_f32 v48, {NLOG2E:#x}, v48
          v_mul_f32 v49, {INV2PI:#x}, v49
          v_add_f32 v52, v52, v52
          v_mul_f32 v56, 0x41000000, v48
          v_mul_f32 v57, 0x41000000, v49
          v_exp_f32 v56, v56
          v_fract_f32 v57, v57
          v_mul_f32 v60, 0x43800000, v48
          v_cos_f32 v58, v57
          v_sin_f32 v59, v57
          v_mul_f32 v61, 0x43800000, v49
          v_mul_f32 v{E8}, v56, v58
          v_mul_f32 v{E8+1}, v56, v59
          v_exp_f32 v60, v60
          v_fract_f32 v61, v61
          v_exp_f32 v48, v48
          v_fract_f32 v49, v49
          v_cos_f32 v62, v61
          v_sin_f32 v63, v61
          v_cos_f32 v54, v49
          v_sin_f32 v55, v49
          v_mul_f32 v{C0}, v50, v52
          v_mul_f32 v{C0+1}, v51, v52
          v_mul_f32 v{E256}, v60, v62
          v_mul_f32 v{E256+1}, v60, v63
          v_mul_f32 v{E1}, v48, v54
          v_mul_f32 v{E1+1}, v48, v55""")
    TB = [48, 56]
    A_YF, A_XF = 112, 144
    def flush(batch):
        p("s_mov_b32 m0, s76")
        for (reg, row) in batch: p(f"ds_write_addtid_b32 v{reg} offset:{272*row}")
    groups = chunks(dmas, 4)
    def after_batch(k):
        if k >= 8 - NEARLY and groups:
            for b in groups.pop(0):
                for i in b: p.add(i)
    cur = E8; ping = [128, 130]
    for bt in range(4):
        T = TB[bt & 1]; batch = []
        for jj in range(8):
            j = 8 * bt + jj
            if j == 0: p(f"v_mov_b32 v{T}, 0x3f80")
            elif j == 1: p(f"v_cvt_pk_bf16_f32 v{T+1}, v{E8}, v{E8+1}")
            else:
                d = ping[j & 1]
                for i in cmul(d, cur, E8): p(i)
                p(f"v_cvt_pk_bf16_f32 v{T+jj}, v{d}, v{d+1}")
                cur = d
            batch.append((T + jj, j))
        flush(batch)
        if bt == 3:
            for s in range(8): p(f"ds_read_b128 a[{A_YF+4*s}:{A_YF+4*s+3}], v15 offset:{32*s}")
        after_batch(bt)
    rows = {}
    lists = [[0,1,2,3, 256,258,260,None, 512,516,520,None, 1024,1032,1280,1288],
             [4,5,6,7, 260,262,264,None, 768,772,776,None, 1536,1544,1792,1800]]
    for hh in range(2):
        for k, pos in enumerate(lists[hh]):
            if pos is not None: rows.setdefault(pos, []).append(8 * (k >> 2) + 4 * hh + (k & 3))
    xr = {0: C0}
    seq = [(0, None, None)]
    for pos in range(1, 9): seq.append((pos, pos - 1, E1))
    for base in range(256, 2048, 256):
        offs = (0, 2, 4, 6, 8) if base == 256 else ((0, 4, 8) if base < 1024 else (0, 8))
        for o in offs: seq.append((base + o, base - 256 + o, E256))
    free = list(range(132, 200, 2))
    batch = []; nb = 0; cnt = 0
    for idx, (pos, src, e) in enumerate(seq):
        if src is not None:
            d = free.pop(0); xr[pos] = d
            for i in cmul(d, xr[src], e): p(i)
        if pos in rows:
            T = TB[nb & 1] + cnt; cnt += 1
            p(f"v_cvt_pk_bf16_f32 v{T}, v{xr[pos]}, -v{xr[pos]+1}")
            for m in rows[pos]: batch.append((T, m))
        if cnt == 7 or idx == len(seq) - 1:
            flush(batch); batch = []; cnt = 0
            if idx == len(seq) - 1:
                for s in range(8): p(f"ds_read_b128 a[{A_XF+4*s}:{A_XF+4*s+3}], v15 offset:{32*s}")
            after_batch(4 + nb); nb += 1
    if main: stamp("chains done")
    KD = 112
    kmf = [f"v_mfma_f32_32x32x16_bf16 v[{KD}:{KD+15}], a[{A_XF+4*s}:{A_XF+4*s+3}], a[{A_YF+4*s}:{A_YF+4*s+3}], {'0' if s == 0 else f'v[{KD}:{KD+15}]'}" for s in range(8)]
    rest = [b for g in groups for b in g]
    def dma1():
        if rest:
            for i in rest.pop(0): p.add(i)
    pre = L(f"""v_add_u32 v14, s36, v{V_L16}
              v_add_u32 v10, s37, v{V_L16}
              v_lshl_add_u32 v12, v8, 4, s77
              v_lshl_add_u32 v13, v9, 3, v12
              v_lshl_add_u32 v11, v9, 9, v12
              v_lshl_add_u32 v15, v9, 10, v12
              v_cmp_eq_u32 vcc, 0, v1
              v_mov_b32 v46, s94
              v_and_b32 v12, 1, v1
              v_cndmask_b32 v46, 0, v46, vcc
              v_cmp_eq_u32 vcc, 1, v12
              v_and_b32 v47, 15, v1
              v_lshl_add_u32 v47, v47, 2, s77""")
    for k in range(8):
        p(kmf[k])
        if k % 2 == 0: dma1()
        for _ in range(2):
            if pre: p(pre.pop(0))
    dma1()
    for i in range(4):
        p(f"ds_write_b128 v14, v[{KD+4*i}:{KD+4*i+3}] offset:{1024*i}")
        if i % 2: dma1()
    p("s_waitcnt lgkmcnt(0)\ns_barrier")
    for i in range(4): p(f"ds_read_b128 v[{48+4*i}:{51+4*i}], v10 offset:{1024*i}")
    dma1(); dma1()
    kx = [f"v_pk_add_f32 v[{KD+i}:{KD+i+1}], v[{KD+i}:{KD+i+1}], v[{48+i}:{49+i}]" for i in range(0, 16, 2)]
    k_ = lambda i: f"v{KD+i}"
    kx += L(f"""v_add_f32 {k_(0)}, {k_(0)}, v46
          v_cvt_pk_bf16_f32 v49, {k_(2)}, {k_(3)}
          v_cvt_pk_bf16_f32 v48, {k_(0)}, {k_(1)}
          v_cvt_pk_bf16_f32 v50, {k_(4)}, {k_(4)}
          v_cvt_pk_bf16_f32 v51, {k_(5)}, {k_(6)}
          v_cvt_pk_bf16_f32 v52, {k_(8)}, {k_(8)}
          v_cvt_pk_bf16_f32 v53, {k_(8)}, {k_(9)}
          v_cvt_pk_bf16_f32 v54, {k_(9)}, {k_(9)}
          v_cvt_pk_bf16_f32 v55, {k_(10)}, {k_(10)}""")
    for b in range(2):
        v, vn = k_(12 + 2*b), k_(13 + 2*b); r = 56 + 4*b
        kx += L(f"""v_cndmask_b32 v12, {v}, {vn}, vcc
              v_cvt_pk_bf16_f32 v{r}, {v}, {v}
              v_cvt_pk_bf16_f32 v{r+1}, {v}, {v}
              v_cvt_pk_bf16_f32 v{r+2}, v12, {vn}
              v_cvt_pk_bf16_f32 v{r+3}, {vn}, {vn}""")
    for i, x in enumerate(kx):
        p(x)
        if i % 10 == 9: dma1()
    kw = [f"ds_write_b64 v13, v[48:49] offset:64", f"ds_write_b64 v13, v[50:51] offset:{64+512}", f"ds_write_b128 v11, v[52:55] offset:{64+1024}",
          f"ds_write_b128 v15, v[56:59] offset:{64+2048}", f"ds_write_b128 v15, v[60:63] offset:{64+2048+512}", f"ds_write_b32 v47, v{V_ZERO}"]

    return rest, kw, dma1
p("s_cmp_lg_u32 s75, 0\ns_cbranch_scc1 L_helper1")
rest, kw, dma1 = kgen(p, dma_bundles(0) + dma_bundles(1), opt("early", 2), True)
KWG = opt("kwg", 1)
NPRE = opt("npre", 20)
while len(rest) > 24 - max(NPRE, 12): dma1()
if not KWG:
    for i in kw: p(i)
stamp("pre-G1 DMA issued")
p("s_waitcnt lgkmcnt(0)")
p.wait_vm(tk["D0"])
p("s_barrier")
stamp("G1 start")
G = Gaps(256)
def sg(st, a=0): return 32 * st + a
BG = 26
RDG = [int(c) for c in OPT.get("rdg", "01346")]
for q in range(31):
    s_ = q & 3
    for i in ([1, 2, 3, 4, 5] if s_ == 3 else RDG): G.base[8 * q + i] += ["ds_read_b128 x", "ds_read_b128 x"]
    G.base[8 * q + 7] += ["s_waitcnt"]; G.base[8 * q + 3] += ["s_waitcnt"]
    if s_ == 3: G.base[8 * q + 1] += ["s_waitcnt", "s_waitcnt", "s_barrier"]
nr = len(rest)
pc = L(f"""s_mov_b32 s20, s60
      s_mov_b32 s21, s61
      s_mov_b32 s22, 0x200000
      s_mov_b32 s23, 0x20000
      s_mov_b32 s41, {F1_OFF}
      s_lshl_b32 s79, s33, 6
      s_lshl_b32 s69, s29, 5
      s_add_u32 s79, s79, s69
      s_mov_b32 s16, s56
      s_mov_b32 s17, s57
      s_mov_b32 s18, {1792*1024}
      s_mul_i32 s69, s24, 28
      s_xor_b32 s42, s34, s33
      s_and_b32 s42, s42, {opt("rot2", 1)}
      s_mul_i32 s42, s42, 14
      s_add_u32 s69, s69, s42
      s_lshl_b32 s80, s69, 14
      s_lshl_b32 s68, s34, 7
      s_add_u32 s80, s80, s68
      s_lshl_b32 s46, s42, 15
      s_lshl_b32 s42, s42, 11
      s_lshl_b32 s81, s24, 12
      v_bfe_u32 v14, v6, 1, 1
      v_lshlrev_b32 v14, 2, v14
      v_xor_b32 v14, v14, v7
      v_lshlrev_b32 v14, 4, v14
      v_lshl_add_u32 v{V_W2O}, v6, 10, v14
      v_add_u32 v{V_W2O+1}, 7168, v{V_W2O}
      v_add_u32 v{V_W2O+2}, {2*7168}, v{V_W2O}
      v_add_u32 v{V_W2O+3}, {3*7168}, v{V_W2O}
      v_and_b32 v14, 1, v3
      v_lshl_add_u32 v14, v14, 2, v5
      v_lshrrev_b32 v15, 1, v14
      v_and_b32 v14, 1, v14
      v_lshlrev_b32 v14, 5, v14
      v_lshl_add_u32 v14, v15, 3, v14
      v_lshl_add_u32 v15, v9, 3, v4
      v_lshl_add_u32 v14, v15, 7, v14
      v_lshrrev_b32 v15, 1, v4
      v_xor_b32 v15, s28, v15
      v_lshl_add_u32 v{V_W2A}, v15, 6, v14
      v_xor_b32 v{V_W2B}, 64, v{V_W2A}
      v_add_u32 v{V_W2A}, s81, v{V_W2A}
      v_add_u32 v{V_W2B}, s81, v{V_W2B}
      v_add_u32 v58, 0x10000, v{V_W2A}
      v_add_u32 v59, 0x10000, v{V_W2B}
      s_mul_i32 s88, s33, 224
      s_add_u32 s88, s88, s69
      s_lshl_b32 s88, s88, 10
      s_add_u32 s88, s88, {H_OFF}
      s_lshr_b32 s43, s87, 3
      s_lshl_b32 s43, s43, 11
      s_bfe_u32 s69, s87, 0x20001
      s_lshl_b32 s69, s69, 8
      s_add_u32 s43, s43, s69
      s_and_b32 s69, s87, 1
      s_lshl_b32 s69, s69, 5
      s_add_u32 s43, s43, s69
      s_lshl_b32 s69, s24, 19
      s_add_u32 s43, s43, s69
      s_add_u32 s43, s43, {U4T_OFF}
      s_add_u32 s39, s43, {4*65536 - 1024}
      s_lshl_b32 s44, s24, 11
      s_add_u32 s44, s44, {UB + 1024}
      v_bfe_u32 v14, v1, 1, 2
      v_lshlrev_b32 v14, 6, v14
      v_and_b32 v15, 1, v6
      v_lshl_add_u32 v14, v15, 10, v14
      v_lshl_add_u32 v14, v3, 16, v14
      v_and_b32 v15, 1, v1
      v_lshl_add_u32 v15, v15, 4, v14
      s_lshl_b32 s68, s28, 8
      s_sub_u32 s68, {UB + 384}, s68
      s_lshl_b32 s69, s29, 4
      s_add_u32 s68, s68, s69
      v_lshlrev_b32 v{V_UF}, 5, v8
      v_lshl_add_u32 v{V_UF}, v9, 7, v{V_UF}
      v_add_u32 v{V_UF}, s68, v{V_UF}
      s_lshl_b32 s38, s24, 8
      s_add_u32 s38, s38, {UB}
      s_lshl_b32 s69, s25, 1
      s_add_u32 s69, s69, s29
      s_mul_i32 s45, s69, 224
      s_lshl_b32 s68, s26, 1
      s_add_u32 s68, s68, s28
      s_mul_i32 s51, s69, 28
      s_add_u32 s51, s51, s68
      s_lshl_b32 s51, s51, 7
      s_add_u32 s51, s51, {F2_OFF}
      s_add_u32 s51, s51, s75
      s_lshl_b32 s68, s68, 2
      s_add_u32 s45, s45, s68
      s_lshl_b32 s45, s45, 10
      s_add_u32 s45, s45, {H_OFF}
      s_add_u32 s45, s45, s75
      s_add_u32 s50, s45, {112*1024}
      s_mul_i32 s52, s33, 28
      s_mul_i32 s68, s24, 7
      s_add_u32 s52, s52, s68
      s_lshl_b32 s52, s52, 7
      s_add_u32 s52, s52, {F2_OFF}
      s_lshl_b32 s53, s24, 13
      s_add_u32 s53, s53, {EX}
      s_lshl_b32 s54, s24, 10
      s_add_u32 s54, s54, {EX}
      s_lshl_b32 s55, s87, 14
      s_lshl_b32 s69, s24, 11
      s_add_u32 s55, s55, s69
      s_add_u32 s55, s55, {A2_OFF}
      s_add_u32 s40, s55, 8192
      s_lshl_b32 s56, s34, 5
      s_lshl_b32 s68, s28, 4
      s_add_u32 s56, s56, s68
      s_lshl_b32 s56, s56, 14
      s_lshl_b32 s68, s79, 3
      s_add_u32 s56, s56, s68
      s_add_u32 s56, s56, {A2_OFF}
      s_lshl_b32 s57, s79, 3
      s_add_u32 s57, s57, {G_OFF}
      s_lshl_b32 s84, s79, 10
      s_lshl_b32 s68, s34, 7
      s_add_u32 s84, s84, s68
      s_lshl_b32 s68, s28, 6
      s_add_u32 s84, s84, s68
      s_mov_b32 s48, {NLOG2E:#x}
      s_mov_b32 s49, {NLOG2E:#x}
      s_mul_i32 s68, s29, {112*1024}
      s_sub_u32 s69, {112*1024}, s68
      v_add_u32 v{V_HA}, s68, v{V_L16}
      v_add_u32 v{V_HB}, s69, v{V_L16}
      v_lshlrev_b32 v0, 7, v8
      v_min_u32 v2, 6, v7
      v_lshlrev_b32 v2, 7, v2
      v_lshlrev_b32 v3, 3, v8
      v_lshl_add_u32 v3, v9, 17, v3
      v_lshlrev_b32 v4, 3, v8
      v_lshlrev_b32 v5, 10, v8
      v_lshl_add_u32 v5, v9, 5, v5
      v_lshl_add_u32 v6, v1, 2, s38""")
V_F1, V_F2, V_AO, V_GO, V_OUT = 0, 2, 3, 4, 5
f1_ld = f"buffer_load_dword v44, v{V_F1}, s[12:15], s41 offen{SC}"
f1_cmp = f"v_cmp_ne_u32 vcc, s{S_NONCE}, v44"
F1L, F1C = opt("f1l", sg(5, 2)), opt("f1c", sg(5, 24))
u_items = [["s_mov_b32 m0, s44", f"ds_write_b32 v6, v{V_ZERO}", f"buffer_load_dwordx4 v15, s[12:15], s43 offen{SC} lds"],
           [f"buffer_load_dwordx4 v15, s[12:15], s39 offen offset:1024{SC} lds"]]
def w2dma(slot, last=False):
    b = [[f"s_add_u32 m0, s81, {16384*slot}", "s_nop 0", f"buffer_load_dwordx4 v{V_W2O}, s[16:19], s80 offen lds"]]
    b += [[f"buffer_load_dwordx4 v{V_W2O+i}, s[16:19], s80 offen offset:{1024*i} lds"] for i in range(1, 4)]
    b[-1] = b[-1] + ["s_add_u32 s80, s80, 32768"] + (["s_sub_u32 s80, s80, s46"] if last else [])
    return b
HIB = [58]
def slotaddr(slot, t): return (V_W2A + t, 16384 * slot) if slot < 4 else (HIB[0] + t, 16384 * (slot - 4))
def w2rd(g, slot):
    o = []
    for u in range(2):
        for t in range(2):
            va, off = slotaddr(slot, t)
            o += [f"ds_read_b64_tr_b16 a[{A_W2+16*g+8*u+4*t+2*hh}:{A_W2+16*g+8*u+4*t+2*hh+1}], v{va} offset:{off + 2048*u + 512*hh}" for hh in range(2)]
    return o
def tg(g): return touch(f"a[{A_W2+16*g}:{A_W2+16*g+15}]")
early_st = [int(c) for c in OPT.get("est", "35") if c.isdigit()]
W2G = {st: k for k, st in enumerate(early_st)}
late = list(range(len(early_st), 7))
assert len(late) <= 5
kf_reads = []
for s in range(16):
    kf_reads.append(f"ds_read_b64_tr_b16 a[{A_KF+4*s}:{A_KF+4*s+1}], v{V_KF} offset:{256*s + 32}")
    kf_reads.append(f"ds_read_b64_tr_b16 a[{A_KF+4*s+2}:{A_KF+4*s+3}], v{V_KF} offset:{256*s}")
uf_reads = [f"ds_read_b128 a[{A_UF+4*s}:{A_UF+4*s+3}], v{V_UF} offset:{512*s}" for s in range(16)]
if KWG:
    for x, g in zip(kw, [2, 5, 7, 13, 15, 18]): G.put(g, [x])
G.put(F1C, [poll_check([f1_ld], [], f1_cmp)]); G.put(F1C - 9, [nonce_check()])
G.spread(rest + dma_bundles(2), 0, BG + 2 * nr)
rdq = []
for st in range(3, 8):
    lo = sg(st - 3, BG) + (2 * nr if st == 3 else 0)
    db = dma_bundles(st)
    cs = st - 2
    if cs in W2G:
        g = W2G[cs]
        wd = w2dma(2)
        if g: wd[0] = [tg(g - 1)] + wd[0]
        wd[-1] = wd[-1] + [mark(f"WG{g}")]
        db = db[:4] + wd + db[4:]
        rd = chunks(w2rd(g, 2), 1); rd[0] = [waitvm(f"WG{g}")] + rd[0]
        tight = (cs + 1) in W2G
        rdq.append((rd, sg(cs, BG + (2 if tight else 14)), sg(cs, BG + (8 if tight else 28))))
    G.spread(db, lo, sg(cs, BG))
G.spread([nonce_ld], sg(4, 5), sg(4, 12)); G.spread([f1_ld], F1L, F1L + 6)
G.spread([u_items[0][:1] + u_items[0][2:], u_items[1] + [mark("U4")]], sg(5, BG + 1), sg(5, BG + 7))
G.spread([u_items[0][1]], sg(5, BG + 4), sg(5, BG + 8))
LG0 = sg(5, BG + 7)
step_g = opt("lgs", 12); LGW = opt("lgw", 24)
spill = []; last_user = {}
if early_st: last_user[2] = len(early_st) - 1
for k, g in enumerate(late):
    slot = k
    wd = w2dma(slot, last=(g == 6))
    if slot in last_user: wd[0] = [tg(last_user[slot])] + wd[0]
    last_user[slot] = g
    wd[-1] = wd[-1] + [mark(f"WG{g}")]
    g0 = LG0 + step_g * k
    assert slot < 3 or g0 >= sg(6, BG)
    assert g0 + step_g <= 256
    G.spread(wd, g0, g0 + step_g)
    gr = g0 + step_g + LGW
    if gr + 6 <= 255:
        rd = chunks(w2rd(g, slot), 1); rd[0] = [waitvm(f"WG{g}")] + rd[0]
        rdq.append((rd, gr, gr + 6))
    else: spill.append((g, slot))
for rd, a_, b_ in rdq: G.spread(rd, a_, b_)
KFE = sg(1, 25) if (early_st and early_st[0] == 2) else sg(2, 25)
G.spread(kf_reads, sg(0, BG + 2), KFE)
G.spread(uf_reads, sg(6, BG + 2), sg(7, 30))
PCE = sg((early_st[0] if early_st else 5) - 1, BG)
e1 = G.spread(pc[:50], sg(0, 20), PCE); G.spread(pc[50:], e1 + 1, sg(4, 28))
RPF = opt("rpf", sg(6, 5))
if RPF: G.spread(["v_accvgpr_read_b32 v14, a252", "global_load_dword a254, v14, s[66:67]"], RPF, RPF + 6)
NOBAR = False
for i in frag_reads(0): p(i)
for q in range(32):
    st, s = q >> 2, q & 3; b = q & 1
    nxt = frag_reads(q + 1) if q < 31 else []
    for i in range(8):
        t, lt = i >> 1, i & 1
        if i == 0: p.touch(f"v[{XF[b]}:{XF[b]+7}]", f"v[{WF[b]}:{WF[b]+7}]")
        if i == 4: p.touch(f"v[{WF[b]+8}:{WF[b]+15}]")
        a = ACC1 + 16 * (4 * lt + t)
        c = "0" if q == 0 else f"v[{a}:{a+15}]"
        p(f"v_mfma_f32_32x32x16_bf16 v[{a}:{a+15}], v[{WF[b]+4*t}:{WF[b]+4*t+3}], v[{XF[b]+4*lt}:{XF[b]+4*lt+3}], {c}")
        gi = 8 * q + i
        if s == 3 and q < 31:
            if i <= 1:
                for x in G.items(gi): p.add(x)
            if i == 1:
                p("s_waitcnt lgkmcnt(0)")
                p.wait_vm(tk[f"D{st+1}"])
                if st == 6: p.wait_vm(tk["U4"])
                if not NOBAR: p("s_barrier")
                if STAMPS and "allst" in OPT: stamp(f"G1 barrier {st}->{st+1}")
            if i >= 1:
                for _ in range(2):
                    if nxt: p(nxt.pop(0))
            if i >= 2:
                for x in G.items(gi): p.add(x)
        else:
            if i in RDG:
                for _ in range(2):
                    if nxt: p(nxt.pop(0))
            for x in G.items(gi): p.add(x)
    assert not nxt
p("s_waitcnt lgkmcnt(0)\ns_barrier")
stamp("G1 end")
sp_slots = [sl for _, sl in spill]
LSLOT = [5, 6] + [sl for sl in range(5) if sl not in sp_slots] + sp_slots
vq = []
for g in range(7):
    wd = w2dma(LSLOT[g])
    if LSLOT[g] in sp_slots: wd[0] = [tg(last_user[LSLOT[g]])] + wd[0]
    wd[-1] = wd[-1] + [mark(f"WL{g}")]
    vq += wd
NC1 = opt("nc1", 12)
c1q = vq[:NC1]; vq = vq[NC1:]
c1_all = list(c1q)
NS1 = opt("ns1", 8)
hst = []
nst_done = 0
for ti in range(8):
    lt, t = ti >> 2, ti & 3
    a = ACC1 + 16 * ti
    T = 64 + 8 * (ti & 1); O = a + 4
    gp = [a, a + 2, a + 8, a + 10]; up = [a + 4, a + 6, a + 12, a + 14]
    for i in range(4): p(f"v_pk_mul_f32 v[{T+2*i}:{T+2*i+1}], v[{gp[i]}:{gp[i]+1}], s[48:49]")
    for i in range(8): p(f"v_exp_f32 v{T+i}, v{T+i}")
    n = (len(c1_all) * (2 * ti + 1)) // 16 - (len(c1_all) * 2 * ti) // 16
    for _ in range(n):
        for i in c1q.pop(0): p.add(i)
    for i in range(4): p(f"v_pk_mul_f32 v[{gp[i]}:{gp[i]+1}], v[{gp[i]}:{gp[i]+1}], v[{up[i]}:{up[i]+1}]")
    for i in range(4): p(f"v_pk_add_f32 v[{T+2*i}:{T+2*i+1}], v[{T+2*i}:{T+2*i+1}], 1.0 op_sel_hi:[1,0]")
    for i in range(8): p(f"v_rcp_f32 v{T+i}, v{T+i}")
    for i in range(4): p(f"v_pk_mul_f32 v[{gp[i]}:{gp[i]+1}], v[{gp[i]}:{gp[i]+1}], v[{T+2*i}:{T+2*i+1}]")
    for i in range(4): p(f"v_cvt_pk_bf16_f32 v{O+i}, v{gp[i]}, v{gp[i]+1}")
    hst.append(f"buffer_store_dwordx4 v[{O}:{O+3}], v{V_L16}, s[12:15], {'s45' if lt == 0 else 's50'} offen offset:{1024*t}{SC}")
    while nst_done < min(ti + 1, -(-NS1 * (ti + 1) // 8)):
        p(hst[nst_done]); nst_done += 1
    n = (len(c1_all) * (2 * ti + 2)) // 16 - (len(c1_all) * (2 * ti + 1)) // 16
    for _ in range(n):
        for i in c1q.pop(0): p.add(i)
hst = hst[nst_done:]
if not hst: tk["H"] = p.mark()
p("L_cjoin:")
stamp("C1 end")
CA = [64, 80, 96]
MM = []; tile_end = []
for tau in range(8):
    a = CA[tau % 3]
    for sp in range(2 * tau + 2):
        v2 = 2 * tau - sp + 1
        c = "0" if sp == 0 else f"v[{a}:{a+15}]"
        MM.append(f"v_mfma_f32_32x32x16_bf16 v[{a}:{a+15}], a[{A_UF+4*v2}:{A_UF+4*v2+3}], a[{A_KF+4*sp}:{A_KF+4*sp+3}], {c}")
    tile_end.append(len(MM))
P2 = [112, 113, 114, 115]; P1 = [116, 117, 118, 119]; ZS = 47
dm = "row_mask:0xf bank_mask:0xf"
def shift_add(tau):
    a = CA[tau % 3]; Y = 120 + 4 * (tau & 1); o = []
    z = lambda qd, j: a + 4 * qd + j
    if tau == 0:
        o += [f"v_mov_b32 v{P1[0]}, v{z(0,1)}", f"v_mov_b32 v{Y}, v{z(0,0)}", f"v_mov_b32 v{P2[0]}, v{z(0,2)}"]
    else:
        o += [f"v_add_f32_dpp v{P1[0]}, v{P2[3]}, v{z(0,1)} wave_ror:1 {dm}", f"v_add_f32_dpp v{Y}, v{P1[3]}, v{z(0,0)} wave_ror:1 {dm}",
              f"v_add_f32_dpp v{P2[0]}, v{ZS}, v{z(0,2)} wave_ror:1 {dm}"]
    o += [f"v_add_f32_dpp v{P2[q]}, v{z(q-1,3)}, v{z(q,2)} wave_ror:1 {dm}" for q in range(1, 4)]
    o += [f"v_add_f32_dpp v{P2[q]}, v{z(q,3)}, v{z(q,2)} wave_shr:1 {dm}" for q in range(4)]
    if tau < 7: o += [f"v_mov_b32 v{ZS}, v{z(3,3)}"]
    o += [f"v_add_f32_dpp v{P1[q]}, v{P2[q-1]}, v{z(q,1)} wave_ror:1 {dm}" for q in range(1, 4)]
    o += [f"v_add_f32_dpp v{P1[q]}, v{P2[q]}, v{z(q,1)} wave_shr:1 {dm}" for q in range(4)]
    o += [f"v_add_f32_dpp v{Y+q}, v{P1[q-1]}, v{z(q,0)} wave_ror:1 {dm}" for q in range(1, 4)]
    o += [f"v_add_f32_dpp v{Y+q}, v{P1[q]}, v{z(q,0)} wave_shr:1 {dm}" for q in range(4)]
    o.append(f"ds_write_b128 v14, v[{Y}:{Y+3}] offset:{1024*tau}")
    return o
HR = 128
ACC = [f"v[240:255]", "a[176:191]", "a[192:207]", "a[208:223]"]
A_WL = 112; WLN = 14
def hfr(step, k): return HR + 8 * (step % 14) + 4 * k
def wfr(step, t):
    if step < 14: return A_W2 + 8 * step + 4 * t
    if step < 22: return A_WL + 8 * (step - 14) + 4 * t
    return A_W2 + 8 * (step - 22) + 4 * t
def g2m(s, c):
    t, lt = c & 1, c >> 1
    return f"v_mfma_f32_32x32x16_bf16 {ACC[c]}, a[{wfr(s,t)}:{wfr(s,t)+3}], v[{hfr(s,lt)}:{hfr(s,lt)+3}], {'0' if s == 0 else ACC[c]}"
NDEF = opt("ndef", 12)
g2seq = []
for s in range(28):
    for c in ([0, 1, 2, 3] if s < 28 - NDEF else [1, 2, 3]): g2seq.append((s, c))
for s in range(28 - NDEF, 28): g2seq.append((s, 0))
step_first = {}
for i, (s, c) in enumerate(g2seq): step_first.setdefault(s, 72 + i)
NG = 72 + 112
C = Gaps(NG)
p(f"v_add_u32 v14, s53, v{V_L16}\nv_mov_b32 v16, v58\nv_mov_b32 v17, v59")
HIB[0] = 16
F2G, F2P, F2C = opt("f2g", 34), opt("f2p", 60), opt("f2c", 68)
win = [(4, 11), (11, 18), (18, 26), (26, 34), (34, 43), (45, 58), (59, 71)]
for tau in range(7):
    g0, g1 = win[tau]
    assert g0 > tile_end[tau] and (tau + 2 > 7 or g1 <= tile_end[tau + 2])
    C.put(g1 - 1, shift_add(tau)[-1:])
def exch(bt, R, pk):
    exr = [f"ds_read_b128 v[{R+4*src}:{R+3+4*src}], v19 offset:{8192*src + 4096*bt}" for src in range(4)]
    if pk: ax = [f"v_pk_add_f32 v[{R+8*c+2*h}:{R+8*c+2*h+1}], v[{R+8*c+2*h}:{R+8*c+2*h+1}], v[{R+8*c+4+2*h}:{R+8*c+5+2*h}]" for c in range(2) for h in range(2)]
    else: ax = [f"v_add_f32 v{R+8*c+i}, v{R+8*c+i}, v{R+8*c+4+i}" for c in range(2) for i in range(4)]
    ax += [f"v_cvt_pk_bf16_f32 v{48+8*bt+2*qd}, v{R+qd}, v{R+8+qd}" for qd in range(4)]
    ast = [f"buffer_store_dwordx2 v[{48+8*bt+2*i}:{49+8*bt+2*i}], v18, s[12:15], {'s55' if bt == 0 else 's40'} offen offset:{512*i}{SC}" for i in range(4)]
    return exr, ax, ast
e0, x0, t0 = exch(0, 240, False)
exr, ax, ast = exch(1, 64, True)
XB = opt("xb", 43)
C.put(XB, ["s_waitcnt lgkmcnt(1)", "s_barrier"] + e0[:1]); C.put(XB + 1, e0[1:])
assert XB == win[4][1]
if hst:
    HSG = opt("hsg", 10)
    for i, x in enumerate(hst): C.put(HSG * i + HSG // 2, [x] + ([mark("H")] if i == len(hst) - 1 else []))
C.put(F2G, ST("pre H ack") + [waitvm("H"), f"buffer_store_dword v{V_NONCE}, v{V_L0}, s[12:15], s51 offen{SC}"] + ST("H acked"))
f2_ld = f"buffer_load_dword v44, v{V_F2}, s[12:15], s52 offen{SC}"
f2_chk = ST("pre F2 check") + [poll_check([f2_ld], [], f"v_cmp_ne_u32 vcc, s{S_NONCE}, v44")] + ST("F2 ok")
C.put(F2P, [f2_ld])
XS = opt("xs", 56)
C.spread(t0, XS, XS + 8)
NVA = opt("nva", 4); VQ1 = opt("vqend", 58)
ntail = 4 * len(spill)
assert NC1 + NVA <= 28 - ntail
agr_end = 0
for k, (g, slot) in enumerate(spill):
    rd = chunks(w2rd(g, slot), 1); rd[0] = [waitvm(f"WG{g}")] + rd[0]
    agr_end = C.spread(rd, agr_end, 4 + 12 * k)
if NVA: C.spread(vq[:NVA], 0, opt("vaend", F2G - 8))
VQ0 = max(opt("vq0", F2G - 6), agr_end + 1)
C.spread(vq[NVA:], VQ0, VQ1)
for tau in range(7): C.spread(shift_add(tau)[:-1], win[tau][0], win[tau][1] - 1)
su = ["v_lshlrev_b32 v18, 3, v1", f"v_add_u32 v19, s54, v{V_L16}"] + [f"v_mov_b32 v{49+2*i}, v{V_NONCE}" for i in range(4)]
C.spread(su, 0, 4)
C.spread(x0, XB + 4, XS)
su = []
for c in range(4): su += [f"s_xor_b32 s69, s24, {c}", "s_mul_i32 s69, s69, 12288", f"s_add_u32 s69, s69, {RB}", f"v_add_u32 v{24+c}, s69, v{V_L16}"]
for i in range(1, 8): su.append(f"v_add_u32 v{27+i}, {16384*i}, v{V_AO}")
C.spread(su, 76, 100)
assert VQ1 <= 68
C.spread([f"v_mov_b32 v{49+2*i}, v{V_NONCE}" for i in range(4, 8)], 68, 71)
hb = []
for step in range(28):
    for k2 in range(2):
        pre = []
        if k2 == 0 and step % 4 == 0 and step: pre.append("s_add_u32 s88, s88, 4096")
        if k2 == 0 and step == 14: pre.append("s_sub_u32 s88, s88, s42")
        hb.append(pre + [f"buffer_load_dwordx4 v[{hfr(step,k2)}:{hfr(step,k2)+3}], v{V_HA+k2}, s[12:15], s88 offen offset:{1024*(step%4)}{SC}"])
AMODE = opt("amode", 0)
NH0 = opt("nh0", 10)
blk = []
if AMODE == 0:
    blk = shift_add(7) + ["s_waitcnt lgkmcnt(0)", "s_barrier"] + exr + ax + ast + f2_chk
    for b in hb[:NH0]: blk += b
    hrest = hb[NH0:]; hdone = NH0
elif AMODE == 1:
    C.put(F2C, f2_chk)
    n1 = (72 - F2C) // 2
    C.spread(hb[:n1], F2C + 1, 72)
    q_ = hb[n1:NH0]
    s7 = shift_add(7)
    blk = s7[:12] + (q_.pop(0) if q_ else []) + s7[12:] + (q_.pop(0) if q_ else []) + ["s_waitcnt lgkmcnt(0)", "s_barrier"] + exr
    for b in q_: blk += b
    blk += ax + ast
    hrest = hb[max(NH0, n1):]; hdone = max(NH0, n1)
C.alu[71] += blk + ST("G2 start")
assert hdone % 2 == 0
LEAD = hdone // 2
for i, b in enumerate(hrest):
    step = (i + hdone) // 2
    g = step_first[step - LEAD] + (0 if i % 2 == 0 else 2)
    C.put(g, b); lasth = g
C.put(100, ["s_barrier"])
for s in range(14, 28):
    g = step_first[s - 2]; sl = LSLOT[(s - 14) // 2]
    for t in range(2):
        va, off = slotaddr(sl, t)
        C.put(g + t, ([waitvm(f"WL{(s-14)//2}")] if (s % 2 == 0 and t == 0) else []) +
              [f"ds_read_b64_tr_b16 a[{wfr(s,t)+2*hh}:{wfr(s,t)+2*hh+1}], v{va} offset:{off + 2048*(s%2) + 512*hh}" for hh in range(2)])
AR = 112
al = [f"buffer_load_dwordx2 v[{AR+2*i}:{AR+1+2*i}], v{V_AO if i == 0 else 27+i}, s[12:15], s56 offen{SC}" for i in range(8)]
al.append(f"buffer_load_dwordx2 v[20:21], v{V_GO}, s[12:15], s57 offen{SC}")
AG = opt("ag", lasth + 1)
C.spread(al, AG, AG + 9)
comb = [f"v_xor_b32 v{AR+1+2*i}, v{V_NONCE}, v{AR+1+2*i}" for i in range(8)] + [f"v_xor_b32 v21, v{V_NONCE}, v21"]
comb += [f"v_or3_b32 v{AR+1}, v{AR+1}, v{AR+3}, v{AR+5}", f"v_or3_b32 v{AR+7}, v{AR+7}, v{AR+9}, v{AR+11}", f"v_or3_b32 v{AR+13}, v{AR+13}, v{AR+15}, v21", f"v_or3_b32 v21, v{AR+1}, v{AR+7}, v{AR+13}"]
a_chk = poll_check(al, comb, "v_cmp_ne_u32 vcc, 0, v21")
gp_ = [f"v_sub_f32 v46, 1.0, v{V_G}"]
for i in range(8): gp_ += [f"v_lshlrev_b32 v{48+2*i}, 16, v{AR+2*i}", f"v_and_b32 v{49+2*i}, 0xffff0000, v{AR+2*i}"]
for i in range(8): gp_ += [f"v_pk_mul_f32 v[{48+2*i}:{49+2*i}], v[{48+2*i}:{49+2*i}], v[{V_G}:{V_G+1}] op_sel_hi:[1,0]"]
rbw = [f"ds_write_b128 v{24+c}, a[{160+16*c+4*i}:{163+16*c+4*i}] offset:{4096*(c-1) + 1024*i}" for c in range(1, 4) for i in range(4)]
C.spread(rbw, NG - NDEF + 1, NG, exact=True)
allm = MM + [g2m(s, c) for (s, c) in g2seq]
for gi, m in enumerate(allm):
    if gi in (72 + 28, 72 + 56, 72 + 84): stamp("G2 quarter")
    p(m)
    if gi == 71: stamp("conv end")
    for i in C.items(gi): p.add(i)
stamp("G2 end")
p.add(a_chk)
p("s_waitcnt lgkmcnt(0)\ns_barrier")
for i in range(4):
    for c in range(3):
        a = 64 + 16 * c + 4 * i
        p(f"ds_read_b128 v[{a}:{a+3}], v24 offset:{4096*c + 1024*i}")
for x in gp_: p(x)
A0 = 240
for i4 in range(4):
    for i in range(4*i4, 4*i4+4, 2):
        p(f"v_pk_add_f32 v[{A0+i}:{A0+i+1}], v[{A0+i}:{A0+i+1}], v[{64+i}:{65+i}]")
        p(f"v_pk_add_f32 v[{80+i}:{81+i}], v[{80+i}:{81+i}], v[{96+i}:{97+i}]")
    for i in range(4*i4, 4*i4+4, 2):
        p(f"v_pk_add_f32 v[{A0+i}:{A0+i+1}], v[{A0+i}:{A0+i+1}], v[{80+i}:{81+i}]")
    for i in range(4*i4, 4*i4+4, 2):
        p(f"v_pk_fma_f32 v[{A0+i}:{A0+i+1}], v[{A0+i}:{A0+i+1}], v[46:47], v[{48+i}:{49+i}] op_sel_hi:[1,0,1]")
    for i in range(2*i4, 2*i4+2):
        p(f"v_cvt_pk_bf16_f32 v{120+i}, v{A0+2*i}, v{A0+2*i+1}")
    if i4 % 2: p(f"buffer_store_dwordx4 v[{120+4*(i4//2)}:{123+4*(i4//2)}], v{V_OUT}, s[20:23], s84 offen offset:{16*(i4//2)}{OSC}")
if STAMPS:
    stamp("stores issued")
    p("s_waitcnt vmcnt(0)")
    stamp("end")
    p(f"""s_lshl_b32 s68, s2, 2
          s_add_u32 s68, s68, s24
          s_lshl_b32 s68, s68, 8
          s_add_u32 s68, s68, {TS_OFF}
          v_lshlrev_b32 v14, 2, v1
          buffer_store_dword v{V_TS}, v14, s[12:15], s68 offen""")
if ENC:
    if ENC == "end": p("s_waitcnt vmcnt(0)"); stamp("end")
    p("""s_memrealtime s[98:99]
         s_waitcnt lgkmcnt(0)
         s_lshl_b32 s101, s101, 2
         s_min_u32 s101, s101, 20000
         s_mov_b32 s100, s98
         L_enc:
         s_memrealtime s[98:99]
         s_waitcnt lgkmcnt(0)
         s_sub_u32 s97, s98, s100
         s_cmp_lt_u32 s97, s101
         s_cbranch_scc1 L_enc""")
p("L_end:\ns_endpgm")

h = Prog()
hsn = 4
def hstamp(name):
    global hsn
    if not STAMPS or "few" in OPT: return
    h("s_memtime s[96:97]\ns_memrealtime s[98:99]\ns_waitcnt lgkmcnt(0)")
    h(f"v_writelane_b32 v{V_TS}, s96, {2*hsn}\nv_writelane_b32 v{V_TS}, s98, {2*hsn+1}"); hsn += 1
HXS = 1040
HX = 49152
h(f"""L_helper:
     s_mov_b32 s75, {BIG:#x}
     s_and_b32 s79, s2, 7
     s_lshl_b32 s79, s79, 2
     s_add_u32 s79, s79, s30
     s_sub_u32 s79, s79, 28
     s_lshl_b32 s80, s79, 2
     s_add_u32 s80, s80, s24
     s_mul_i32 s81, s80, 14336
     v_min_u32 v44, 55, v1
     v_lshl_add_u32 v44, v44, 7, s81
     s_barrier
     global_load_dword a255, v44, s[56:57]
     s_add_u32 s81, s81, 7168
     s_lshl_b32 s84, s79, 16
     s_lshl_b32 s68, s24, 14
     s_add_u32 s84, s84, s68
     s_mul_i32 s83, s24, {16*HXS}
     s_add_u32 s83, s83, {HX}
     s_mov_b32 s82, s83
     s_branch L_hjoin
     L_helper1:
     v_min_u32 v44, 55, v1
     v_lshl_add_u32 v44, v44, 7, s81
     s_waitcnt vmcnt(2)""")
xl = [L(f"s_mov_b32 m0, s83\ns_add_u32 s83, s83, {HXS}\nbuffer_load_dwordx4 v{V_L16}, s[4:7], s84 offen lds\ns_add_u32 s84, s84, 1024") for i in range(16)]
hd = [["global_load_dword a253, v44, s[56:57]"], [], [], []] + [[], [], [], []] * opt("hgap", 2) + xl
hrest, hkw, hdma1 = kgen(h, hd, opt("hearly", 3), False)
for i in hkw: h(i)
hstamp("K done")
while hrest: hdma1()
h(f"global_load_dwordx4 v[124:127], v{V_L16}, s[58:59]")
h(nonce_ld)
tk["hx"] = h.mark()
h(f"""v_add_u32 v14, s82, v{V_L16}
     v_mov_b32 v12, {BIG:#x}
     v_cmp_eq_u32 vcc, 0, v0
     s_lshl_b32 s86, s79, 7
     s_add_u32 s86, s86, {F1_OFF}
     v_cndmask_b32 v13, v12, 0, vcc
     v_lshl_add_u32 v10, v4, 2, v5
     v_mul_u32_u24 v10, {HXS}, v10
     v_lshl_add_u32 v10, v3, 3, v10
     s_lshl_b32 s68, s24, 8
     s_add_u32 s68, s68, {HX}
     v_add_u32 v45, s68, v10
     s_lshl_b32 s81, s80, 14
     s_add_u32 s81, s81, {U4T_OFF}""")
h.wait_vm(tk["hx"])
h.add(nonce_check())
h("s_barrier")
hstamp("x landed")
for cg in range(8):
    r = 128 + 8 * cg
    for blk in range(2):
        for hh in range(2): h(f"ds_read_b64_tr_b16 v[{r+blk*4+hh*2}:{r+blk*4+hh*2+1}], v45 offset:{(32*blk + 16*hh) * HXS + 32*cg}")
for i in range(16): h(f"ds_read_b128 v[{192+4*i}:{195+4*i}], v14 offset:{HXS*i}")
dots = [f"v_mov_b32 v{64+i}, 0" for i in range(16)]
for k in range(4): dots += [f"v_dot2_f32_bf16 v{64+i}, v{192+4*i+k}, v{124+k}, v{64+i}" for i in range(16)]
for i in range(16):
    h(f"buffer_store_dwordx4 v[{128+4*i}:{131+4*i}], v{V_L16}, s[12:15], s81 offen offset:{1024*(i%4)}{SC}")
    if i % 4 == 3: h("s_add_u32 s81, s81, 4096")
    if i >= 6:
        for x in dots[8*(i-6):8*(i-5)]: h(x)
hstamp("u4 stores issued")
for sh in ("row_shr:1", "row_shr:2", "row_shr:4", "row_shr:8"):
    for i in range(16): h(f"v_add_f32_dpp v{64+i}, v{64+i}, v{64+i} {sh} row_mask:0xf bank_mask:0xf bound_ctrl:0")
for i in range(16): h(f"v_add_f32_dpp v{64+i}, v{64+i}, v{64+i} row_bcast:15 row_mask:0xa bank_mask:0xf")
for i in range(16): h(f"v_add_f32_dpp v{64+i}, v{64+i}, v{64+i} row_bcast:31 row_mask:0xc bank_mask:0xf")
h(f"s_waitcnt vmcnt(0) lgkmcnt(0)\ns_barrier\nbuffer_store_dword v{V_NONCE}, v13, s[12:15], s86 offen{SC}")
hstamp("FU issued")
h("v_mov_b32 v80, 0")
for i in range(0, 16, 4):
    for k in range(4): h(f"v_readlane_b32 s{36+k}, v{64+i+k}, 63")
    for k in range(4): h(f"v_writelane_b32 v80, s{36+k}, {i+k}")
h(f"""v_cvt_pk_bf16_f32 v80, v80, v80
     v_and_b32 v80, 0xffff0000, v80
     v_mul_f32 v80, {NLOG2E:#x}, v80
     v_exp_f32 v80, v80
     v_cmp_gt_u32 vcc, 16, v1
     v_add_f32 v80, 1.0, v80
     v_rcp_f32 v80, v80
     v_lshlrev_b32 v13, 3, v1
     v_mov_b32 v81, v{V_NONCE}
     v_cvt_pk_bf16_f32 v80, v80, v80
     v_cndmask_b32 v13, v12, v13, vcc
     v_and_b32 v80, 0xffff0000, v80
     s_lshl_b32 s68, s80, 7
     s_add_u32 s68, s68, {G_OFF}
     buffer_store_dwordx2 v[80:81], v13, s[12:15], s68 offen{SC}""")
hstamp("gate done")
for i in pc: h(i)
for i in kf_reads: h(i)
h("s_waitcnt lgkmcnt(0)\ns_barrier")
HIB[0] = 58
free_sl = [sl for sl in range(7) if sl not in sp_slots]
hsl = {g: sl for g, sl in spill}
for g in range(7):
    if g not in hsl: hsl[g] = free_sl.pop(0)
    for b_ in w2dma(hsl[g], last=(g == 6)):
        for i in b_: h(i)
    tk[f"hg{g}"] = h.mark()
h(f1_ld)
for g in range(7):
    if (g, hsl[g]) in spill: continue
    h.wait_vm(tk[f"hg{g}"])
    for i in w2rd(g, hsl[g]): h(i)
h.add(poll_check([f1_ld], [], f1_cmp))
for b_ in u_items:
    for i in b_: h(i)
h("s_waitcnt vmcnt(0) lgkmcnt(0)\ns_barrier")
for i in uf_reads: h(i)
for b_ in c1_all:
    for i in b_:
        if not callable(i): h(i)
h("s_waitcnt vmcnt(0) lgkmcnt(0)\ns_barrier")
hstamp("helper joins")
h("s_branch L_cjoin")

body = p.finalize(True) + h.finalize(True) + slow.finalize() + ["L_code_end:"]
hdr = open("cdna_kernels/" + NAME + ".s.ref").read().split("; Override launch")[0]
o = [hdr.rstrip(), "; @launch grid=(256,1,1) block=(256,1,1) lds=163840", '.amdgcn_target "amdgcn-amd-amdhsa--gfx950"\n.text',
     f".globl {KN}\n.p2align 8\n.type {KN},@function\n{KN}:"]
o += [("" if l.endswith(":") else "    ") + l for l in body]
o.append("    s_endpgm")
o.append(f""".section .rodata,"a"
.p2align 6
.amdhsa_kernel {KN}
  .amdhsa_next_free_vgpr 512
  .amdhsa_next_free_sgpr 102
  .amdhsa_accum_offset 256
  .amdhsa_group_segment_fixed_size 0
  .amdhsa_kernarg_size 120
  .amdhsa_user_sgpr_count 2
  .amdhsa_user_sgpr_kernarg_segment_ptr 1
  .amdhsa_system_sgpr_workgroup_id_x 1
.end_amdhsa_kernel""")
open(sys.argv[1], "w").write("\n".join(o) + "\n")
```

```python
import sys
from asmlib import *

NAME = "gated_mix__ssm_conv_s4d__glu_gated_swiglu__prompt"
KN = NAME + "_kernel"
OPT = {a.split("=")[0]: (a.split("=") + ["1"])[1] for a in sys.argv[2:]}
def opt(k, d): return int(OPT.get(k, d))
STAMPS = "ts" in OPT
H_OFF, W2T_OFF, U4T_OFF, A2_OFF, G_OFF, F1_OFF, F2_OFF, TS_OFF, WS_USED = 0x10000, 0x720000, 0x900000, 0xB00000, 0xF00000, 0xF20000, 0xF40000, 0xF80000, 0x1000000
KS, KSW = 0, 8704
KB, KBC = 40832, 4160
WSLOTS = [49152, 81920, 0]
W3OFF = 16384
XR, XSLOT = 114688, 16384
KX = XR + 2 * XSLOT
UB, UBC = XR + 2 * XSLOT, 4608
EX = 114688
RB = 114688
LOG2E, NLOG2E, INV2PI = 0x3fb8aa3b, 0xbfb8aa3b, 0x3e22f983
SC = " sc1"
SPIN_MAX = 200000
PFH = opt('pfh', 0)
OSC = {"0": "", "1": " sc1", "2": " nt", "3": " sc0 sc1", "4": " sc1 nt"}[OPT.get("osc", "0")]
BIG = 0x40000000
V_WOFF, V_XOFF, V_XRD, V_WRA, V_WRB = 16, 20, 24, 28, 32
V_KF, V_UF, V_L16, V_L0, V_ZERO, V_NL, V_NONCE, V_TS = 36, 37, 38, 39, 40, 41, 42, 43
V_W2A, V_W2B, V_HA, V_HB = 10, 11, 12, 13
V_G = 20
V_W2O = 60
STG = 32768
ACC1 = 128
WF = [64, 88]; XF = [80, 104]
A_W2, A_KF, A_UF = 0, 112, 176
S_NONCE = 35

p = Prog(); slow = Prog()
nstamp = 0
ENC = OPT.get("enc", "").replace("_", " ")
def stamp(name, pp=None):
    global nstamp
    if ENC and name == ENC:
        (pp or p)("s_memrealtime s[98:99]\ns_waitcnt lgkmcnt(0)\ns_sub_u32 s101, s98, s100")
    if not STAMPS: return
    if name == "kernarg": return
    if "few" in OPT and name not in ("pre-kernarg", "G1 start", "G1 end", "C1 end", "G2 start", "G2 end", "end"): return
    pp = pp or p
    i = nstamp; nstamp += 1
    pp("s_memtime s[96:97]\ns_memrealtime s[98:99]\ns_waitcnt lgkmcnt(0)")
    pp(f"v_writelane_b32 v{V_TS}, s96, {2*i}\nv_writelane_b32 v{V_TS}, s98, {2*i+1}")
def ST(name): return [lambda pp: stamp(name, pp)] if (STAMPS or ENC) else []
def L(txt): return [l.strip() for l in txt.strip().split("\n") if l.strip()]
def cmul(d, a, b):
    return [f"v_pk_mul_f32 v[{d}:{d+1}], v[{a}:{a+1}], v[{b}:{b+1}] op_sel:[0,0] op_sel_hi:[1,0]",
            f"v_pk_fma_f32 v[{d}:{d+1}], v[{a}:{a+1}], v[{b}:{b+1}], v[{d}:{d+1}] op_sel:[1,1,0] op_sel_hi:[0,1,1] neg_lo:[1,0,0]"]
tk = {}
def mark(name):
    def f(pp): tk[name] = pp.mark()
    return f
def waitvm(name):
    f = lambda pp: pp.wait_vm(tk[name])
    f.cost = 4
    return f
def touch(r):
    f = lambda pp: pp.touch(r)
    f.cost = 4
    return f
def chunks(lst, n): return [lst[i:i+n] for i in range(0, len(lst), n)]
def icost(t):
    if callable(t): return getattr(t, "cost", 0), "s"
    op = t.split()[0]
    if op.endswith(":"): return 0, "s"
    if op.startswith("ds_") or op.startswith(("buffer_", "global_")):
        k = 8
        if op.startswith("ds_write"): k = {"ds_write_b128": 26, "ds_write_b64": 16}.get(op, 12)
        if "store" in op: k = 8 + 4 * {"x4": 4, "x2": 2}.get(op[-2:], 1)
        return k, "m"
    if op.startswith("v_"): return (8 if op in ("v_exp_f32", "v_rcp_f32") else 4), "v"
    if op == "s_nop": return 4 * (int(t.split()[1]) + 1), "s"
    if op == "s_barrier": return 12, "s"
    return 4, "s"
def seqcost(items):
    c = 4; prev = "mfma"
    for t in items:
        k, kind = icost(t)
        if kind == "m":
            if prev == "v": k += 8
            prev = "m"
        elif kind == "v":
            if prev == "mfma": k += 4
            prev = "v"
        elif k and prev == "mfma": prev = "s"
        c += k
    return c
class Gaps:
    def __init__(self, n):
        self.vm = set(); self.n = n; self.base = [[] for _ in range(n)]; self.mem = [[] for _ in range(n)]; self.alu = [[] for _ in range(n)]
    def items(self, i): return self.mem[i] + self.alu[i]
    def cost(self, i, b=None, ismem=False):
        m, a = self.mem[i], self.alu[i]
        if b is not None:
            if ismem: m = m + b
            else: a = a + b
        return seqcost(self.base[i] + m + a)
    def put(self, i, items):
        ismem = not any(icost(t)[1] == "v" or getattr(t, "alu", False) for t in items)
        (self.mem if ismem else self.alu)[i] += items
    def spread(self, bundles, g0, g1, exact=False):
        n = len(bundles); last = g0; lastalu = False
        for k, b in enumerate(bundles):
            b = b if isinstance(b, list) else [b]
            hasv = any(icost(t)[1] == "v" or getattr(t, "alu", False) for t in b)
            hasm = any(icost(t)[1] == "m" for t in b)
            ismem = hasm and not hasv
            ideal = g0 + (k * (g1 - g0)) // n
            lo = last + (1 if (ismem and lastalu) else 0)
            isvm = any((not callable(t)) and t.startswith(("buffer_", "global_")) for t in b)
            if exact: i = max(ideal, lo)
            else:
                cand = sorted(range(lo, g1), key=lambda j: (abs(j - ideal), j))
                if isvm:
                    c2 = [j for j in cand if j <= ideal + 1 and not any(abs(j - v) < 2 for v in self.vm)]
                    if c2: cand = c2
                fit = [j for j in cand if self.cost(j, b, ismem) <= 32 and j <= ideal + 6]
                if fit: i = fit[0]
                elif cand:
                    near = [j for j in cand if j <= ideal + 6] or cand[:1]
                    i = min(near, key=lambda j: (self.cost(j, b, ismem) - max(32, self.cost(j)), abs(j - ideal)))
                else:
                    i = last; ismem = False
            if isvm: self.vm.add(i)
            (self.mem if ismem else self.alu)[i] += b
            lastalu = (not ismem) or (lastalu and i == last)
            last = i
        return last

def dma_bundles(st):
    slot = st % 3; b = []
    for j in range(4):
        pre = [f"s_add_u32 m0, s70, {slot * XSLOT}", f"s_xor_b32 s73, s27, {st * 128}"] if j == 0 else []
        b.append(pre + [f"buffer_load_dwordx4 v{V_XOFF+j}, s[4:7], s73 offen offset:{1024*j} lds"])
    for j in range(8):
        pre = []
        if j % 4 == 0: pre = [f"s_add_u32 m0, s71, {WSLOTS[slot] + 1024*j}", f"s_add_u32 s74, {'s72' if st < 4 else 's3'}, {((st & 3) * 64 + 4 * j) * 3584}"]
        b.append(pre + [f"buffer_load_dwordx4 v{V_WOFF+j%4}, s[8:11], s74 offen offset:{1024*(j%4)} lds"])
    b[-1] = b[-1] + [mark(f"D{st}")]
    return b
def frag_reads(q):
    st, s = q >> 2, q & 3
    slot = st % 3; b = q & 1
    x = [f"ds_read_b128 v[{XF[b]+4*lt}:{XF[b]+4*lt+3}], v{V_XRD+s} offset:{slot * XSLOT + 4096*lt}" for lt in range(2)]
    w = []
    for t in range(4):
        base, off = (V_WRB + t, 0) if slot == 2 else (V_WRA + t, 32768 * slot)
        w.append([f"ds_read_b64_tr_b16 v[{WF[b]+4*t+2*h}:{WF[b]+4*t+2*h+1}], v{base} offset:{off + (16*s + 4*h) * 256}" for h in range(2)])
    return [x[0]] + w[0] + [x[1]] + w[1] + w[2] + w[3]

npoll = 0
def poll_check(reload_lines, combine_lines, cmp_line):
    global npoll
    k = npoll; npoll += 1
    def f(pp):
        if STAMPS: pp("s_mov_b32 s95, 0")
        for l in combine_lines: pp(l)
        pp(cmp_line)
        pp(f"s_cbranch_vccnz L_slow{k}")
        pp(f"L_back{k}:")
        if STAMPS: pp(f"v_writelane_b32 v{V_TS}, s95, {58+k}")
    slow(f"L_slow{k}:\ns_mov_b32 s95, 0\nL_slowloop{k}:")
    if opt("sleep", 2): slow(f"s_sleep {opt('sleep', 2)}")
    for l in reload_lines: slow(l)
    slow("s_waitcnt vmcnt(0)")
    for l in combine_lines: slow(l)
    slow(f"""s_add_u32 s95, s95, 1
             s_cmp_ge_u32 s95, {SPIN_MAX}
             s_cbranch_scc1 L_back{k}
             {cmp_line}
             s_cbranch_vccnz L_slowloop{k}
             s_branch L_back{k}""")
    f.cost = 20 + 4 * len(combine_lines); f.alu = True
    return f
nonce_ld = f"global_load_dword v{V_NL}, v{V_ZERO}, s[62:63]{SC}"
nn = 0
def nonce_check():
    global nn
    k = nn; nn += 1
    def f(pp):
        pp(f"v_readfirstlane_b32 s{S_NONCE}, v{V_NL}")
        pp(f"s_cmp_eq_u32 s{S_NONCE}, 0\ns_cbranch_scc1 L_slown{k}\nL_backn{k}:")
        pp(f"v_mov_b32 v{V_NONCE}, s{S_NONCE}")
    slow(f"""L_slown{k}:
         s_mov_b32 s95, 0
         L_slownloop{k}:
         {nonce_ld}
         s_waitcnt vmcnt(0)
         v_readfirstlane_b32 s{S_NONCE}, v{V_NL}
         s_add_u32 s95, s95, 1
         s_cmp_ge_u32 s95, {SPIN_MAX}
         s_cbranch_scc1 L_backn{k}
         s_cmp_eq_u32 s{S_NONCE}, 0
         s_cbranch_scc1 L_slownloop{k}
         s_branch L_backn{k}""")
    f.cost = 28; f.alu = True
    return f

p("s_cmp_ge_u32 s2, 256\ns_cbranch_scc1 L_end")
p(f"""s_load_dwordx16 s[36:51], s[0:1], 0
     s_load_dwordx8 s[52:59], s[0:1], 64
     s_load_dwordx4 s[60:63], s[0:1], 96
     s_load_dwordx2 s[64:65], s[0:1], 112
     s_memrealtime s[76:77]
     s_getpc_b64 s[66:67]
     L_pc:
     v_lshrrev_b32 v2, 6, v0
     v_and_b32 v1, 63, v0
     s_lshr_b32 s30, s2, 3
     v_readfirstlane_b32 s24, v2
     v_lshrrev_b32 v3, 5, v0
     v_lshl_add_u32 v3, s30, 3, v3
     v_min_u32 v3, (L_code_end-L_pc)>>7, v3
     v_lshlrev_b32 v3, 7, v3
     global_load_dword a254, v3, s[66:67]
     v_accvgpr_write_b32 a252, v3""")
if STAMPS: p(f"v_mov_b32 v{V_TS}, 0")
p(f"""s_and_b32 s31, s2, 1
     s_bfe_u32 s32, s2, 0x20001
     s_and_b32 s28, s24, 1
     s_lshr_b32 s29, s24, 1
     s_and_b32 s87, s2, 7
     s_lshl_b32 s87, s87, 5
     s_add_u32 s87, s87, s30
     s_lshl_b32 s78, s87, 1
     s_add_u32 s78, s78, s29
     s_lshl_b32 s68, s78, 8
     s_lshl_b32 s69, s28, 7
     s_add_u32 s68, s68, s69
     v_lshl_add_u32 v10, v1, 1, s68
     v_mov_b32 v48, 0
     v_mov_b32 v49, 0
     v_mov_b32 v50, 0
     v_mov_b32 v51, 0
     s_lshl_b32 s92, s78, 1
     v_mov_b32 v52, 0
     v_mov_b32 v46, 0
     v_mov_b32 v53, s92
     v_and_b32 v8, 31, v1
     s_lshl_b32 s68, s30, 1
     s_add_u32 s68, s68, s29
     {"v_and_b32 v11, 15, v1" if PFH else "v_mov_b32 v11, v8"}
     v_lshl_add_u32 v11, s68, {4 if PFH else 5}, v11
     s_movk_i32 s69, 9363
     v_mul_u32_u24 v12, s69, v11
     v_lshrrev_b32 v12, 16, v12
     v_mul_u32_u24 v12, {2*3584 - 7*128}, v12
     v_lshl_add_u32 v11, v11, 7, v12
     s_mul_i32 s91, s32, 896
     s_mul_i32 s68, s31, 3584
     s_add_u32 s91, s91, s68
     s_lshl_b32 s68, s30, 2
     s_add_u32 s68, s68, s24
     s_mul_i32 s68, s68, {10 if PFH else 20}
     v_min_u32 v12, {9 if PFH else 19}, v1
     v_add_u32 v12, s68, v12
     v_min_u32 v12, {0x3ff if PFH else 0x7ff}, v12
     {"v_and_b32 v13, 0x3fc, v12" if PFH else "s_nop 0"}
     {"v_add_u32 v12, v12, v13" if PFH else "s_nop 0"}
     v_lshlrev_b32 v12, 7, v12
     s_lshl_b32 s90, s31, 2
     s_add_u32 s90, s90, s32
     s_lshl_b32 s90, s90, 18
     v_lshlrev_b32 v{V_L16}, 4, v1
     v_mov_b32 v{V_ZERO}, 0
     v_lshrrev_b32 v3, 4, v1
     v_bfe_u32 v4, v1, 2, 2
     v_and_b32 v5, 3, v1
     v_lshrrev_b32 v6, 3, v1
     v_and_b32 v7, 7, v1
     v_lshrrev_b32 v9, 5, v1""")
stamp("pre-kernarg")
p("s_waitcnt lgkmcnt(0)")
if ENC: p("s_mov_b32 s100, s76\ns_mov_b32 s101, 0")
stamp("kernarg")
if "tlb" in OPT:
    p("s_load_dword s97, s[60:61], 0\ns_load_dword s97, s[62:63], 128\ns_load_dword s97, s[56:57], 0\ns_load_dword s97, s[58:59], 0".replace("s97", "s96"))
    for k in range(8): p(f"s_mov_b32 s97, {k * 0x200000 + 0x100}\ns_load_dword s96, s[64:65], s97")
p(f"""global_load_short_d16_hi v48, v10, s[38:39]
     global_load_short_d16_hi v49, v10, s[40:41]
     global_load_short_d16_hi v50, v10, s[42:43]
     global_load_short_d16_hi v51, v10, s[44:45]
     global_load_short_d16_hi v52, v53, s[46:47]
     global_load_short_d16_hi v46, v53, s[48:49]
     s_mov_b32 s4, s36
     s_mov_b32 s5, s37
     s_mov_b32 s6, 0x200000
     s_mov_b32 s7, 0x20000
     s_cmp_eq_u32 s28, 0
     s_cselect_b32 s8, s52, s54
     s_cselect_b32 s9, s53, s55
     s_mov_b32 s10, {512*3584}
     s_mov_b32 s11, 0x20000
     s_mov_b32 s12, s64
     s_mov_b32 s13, s65
     s_mov_b32 s14, {WS_USED}
     s_mov_b32 s15, 0x20000
     s_mov_b32 s75, 0
     s_cmp_ge_u32 s30, 28
     s_cbranch_scc1 L_helper
     s_barrier
     buffer_load_dword a255, v11, s[8:11], s91 offen
     buffer_load_dword a253, v12, s[4:7], s90 offen
     L_hjoin:
     v_mov_b32 v44, v11
     v_mov_b32 v45, v12""")
tk["B1"] = p.mark()
p(f"""v_mov_b32 v12, {BIG:#x}
      v_cmp_eq_u32 vcc, 0, v0
      s_mov_b32 s16, s62
      s_mov_b32 s17, s63
      s_mov_b32 s18, 256
      s_mov_b32 s19, 0x20000
      v_cndmask_b32 v14, v12, 0, vcc
      v_cmp_eq_u32 vcc, 0, v1
      s_or_b32 s76, s76, 1
      v_mov_b32 v13, s76
      v_cndmask_b32 v{V_L0}, v12, 0, vcc
      s_lshl_b32 s68, s2, 10
      buffer_store_dword v13, v14, s[16:19], s68 offen{SC}""")
p(f"""s_and_b32 s68, s32, 1
      s_lshl_b32 s68, s68, 2
      s_and_b32 s34, s30, 7
      s_lshr_b32 s69, s30, 3
      s_add_u32 s26, s69, s68
      s_add_u32 s25, s34, s68
      s_cmp_ge_u32 s30, 24
      s_cselect_b32 s26, 3, s26
      s_cselect_b32 s25, s25, s34
      s_lshr_b32 s68, s32, 1
      s_mul_i32 s68, s68, 7
      s_add_u32 s26, s26, s68
      s_lshl_b32 s68, s31, 3
      s_add_u32 s25, s25, s68
      s_mul_i32 s69, s30, 37
      s_lshr_b32 s69, s69, 8
      s_mul_i32 s68, s69, 7
      s_sub_u32 s68, s30, s68
      s_cmp_ge_u32 s68, 3
      s_addc_u32 s34, s68, 0
      s_cmp_ge_u32 s30, 28
      s_cselect_b32 s34, 3, s34
      s_cselect_b32 s69, s68, s69
      s_and_b32 s33, s2, 7
      s_lshl_b32 s33, s33, 2
      s_add_u32 s33, s33, s69""")
p(f"""v_and_b32 v12, 15, v1
      s_lshl_b32 s68, s28, 1
      v_lshl_add_u32 v13, v3, 2, s68
      v_xor_b32 v13, v13, v12
      v_lshlrev_b32 v13, 4, v13
      v_mul_u32_u24 v14, 0xe00, v3
      v_add_u32 v{V_WOFF}, v13, v14
      v_add_u32 v{V_WOFF+1}, {14336-1024}, v{V_WOFF}
      v_add_u32 v{V_WOFF+2}, {2*(14336-1024)}, v{V_WOFF}
      v_add_u32 v{V_WOFF+3}, {3*(14336-1024)}, v{V_WOFF}
      s_lshl_b32 s68, s25, 7
      s_lshl_b32 s69, s24, 5
      s_add_u32 s68, s68, s69
      s_lshl_b32 s68, s68, 10
      s_add_u32 s68, s68, s75
      v_lshrrev_b32 v13, 1, v6
      v_xor_b32 v13, v13, v7
      v_lshlrev_b32 v13, 4, v13
      v_lshl_add_u32 v13, v6, 10, v13
      v_add_u32 v{V_XOFF}, s68, v13
      v_xor_b32 v{V_XOFF+1}, 64, v{V_XOFF}
      v_add_u32 v{V_XOFF+1}, {8192-1024}, v{V_XOFF+1}
      v_add_u32 v{V_XOFF+2}, {2*(8192-1024)}, v{V_XOFF}
      v_add_u32 v{V_XOFF+3}, {2*(8192-1024)}, v{V_XOFF+1}
      s_lshl_b32 s70, s24, 12
      s_add_u32 s70, s70, {XR}
      s_lshl_b32 s71, s28, 14
      s_lshl_b32 s68, s29, 13
      s_add_u32 s71, s71, s68
      s_mul_i32 s72, s29, {32*3584}
      s_lshl_b32 s68, s26, 8
      s_add_u32 s72, s72, s68
      s_add_u32 s72, s72, s75
      s_xor_b32 s27, s25, s26
      s_and_b32 s27, s27, {opt("rot1", 0)}
      s_mul_i32 s68, s27, {256*3584}
      s_sub_u32 s3, {256*3584}, s68
      s_add_u32 s3, s3, s72
      s_add_u32 s72, s72, s68
      s_lshl_b32 s27, s27, 9
      s_mul_i32 s76, s24, {KSW}
      v_mul_u32_u24 v15, 272, v8
      v_lshl_add_u32 v15, v9, 4, v15
      v_add_u32 v15, s76, v15
      s_lshl_b32 s68, s28, 4
      v_xor_b32 v47, s68, v8
      v_mul_u32_u24 v47, 272, v47
      v_lshl_add_u32 v47, v9, 4, v47
      v_add_u32 v47, s76, v47""")
p(f"""v_bfe_u32 v11, v8, 1, 3
      v_xor_b32 v11, v11, v9
      v_lshlrev_b32 v11, 4, v11
      v_lshl_add_u32 v11, v8, 7, v11
      s_lshl_b32 s68, s29, 13
      s_add_u32 s68, s68, {XR}
      v_add_u32 v{V_XRD}, s68, v11""")
for s in range(1, 4): p(f"v_xor_b32 v{V_XRD+s}, {32*s}, v{V_XRD}")
p(f"""v_and_b32 v11, 1, v3
      v_bfe_u32 v12, v5, 1, 1
      v_and_b32 v13, 1, v5
      v_lshl_add_u32 v13, v13, 1, v11
      v_lshlrev_b32 v13, 3, v13
      v_lshl_add_u32 v13, v12, 14, v13
      v_lshl_add_u32 v12, v4, 1, v12
      s_lshl_b32 s68, s28, 2
      v_xor_b32 v12, s68, v12
      v_lshl_add_u32 v13, v12, 5, v13
      v_lshl_add_u32 v14, v9, 3, v4
      v_lshl_add_u32 v{V_WRB}, v14, 8, v13""")
for t in range(1, 4): p(f"v_xor_b32 v{V_WRB+t}, {32*t}, v{V_WRB}")
for t in range(4): p(f"v_add_u32 v{V_WRA+t}, {WSLOTS[0]}, v{V_WRB+t}")
p(f"""v_lshl_add_u32 v12, v11, 2, v5
      s_mul_i32 s77, s29, {KBC}
      s_add_u32 s77, s77, {KB}
      v_sub_u32 v12, v12, v14
      s_lshl_b32 s68, s28, 7
      s_add_u32 s69, s68, s77
      s_add_u32 s69, s69, 96
      v_lshl_add_u32 v{V_KF}, v12, 3, s69
      s_lshl_b32 s36, s24, 12
      s_add_u32 s36, s36, {KX}
      s_xor_b32 s37, s36, 4096
""")
assert KX % 8192 == 0 and WSLOTS[1] == WSLOTS[0] + 32768 and WSLOTS[2] == 0 and KS == 0
stamp("setup done")
def kgen(p, dmas, NEARLY, main, nafter):
    p.touch("v[48:52]", "v46")
    if main: stamp("params landed")
    C0, E1, E8, E256 = 64, 66, 68, 70
    p(f"""v_mul_f32 v48, {LOG2E:#x}, v48
          v_mul_f32 v52, {LOG2E:#x}, v52
          v_exp_f32 v52, v52
          v_exp_f32 v48, v48
          v_cvt_pk_bf16_f32 v53, v52, v48
          v_lshlrev_b32 v52, 16, v53
          v_and_b32 v48, 0xffff0000, v53
          v_mul_f32 v48, v48, v52
          v_mul_f32 v49, v49, v52
          v_mul_f32 v48, {NLOG2E:#x}, v48
          v_mul_f32 v49, {INV2PI:#x}, v49
          v_add_f32 v52, v52, v52
          v_mul_f32 v56, 0x41000000, v48
          v_mul_f32 v57, 0x41000000, v49
          v_exp_f32 v56, v56
          v_fract_f32 v57, v57
          v_mul_f32 v60, 0x43800000, v48
          v_cos_f32 v58, v57
          v_sin_f32 v59, v57
          v_mul_f32 v61, 0x43800000, v49
          v_mul_f32 v{E8}, v56, v58
          v_mul_f32 v{E8+1}, v56, v59
          v_exp_f32 v60, v60
          v_fract_f32 v61, v61
          v_exp_f32 v48, v48
          v_fract_f32 v49, v49
          v_cos_f32 v62, v61
          v_sin_f32 v63, v61
          v_cos_f32 v54, v49
          v_sin_f32 v55, v49
          v_mul_f32 v{C0}, v50, v52
          v_mul_f32 v{C0+1}, v51, v52
          v_mul_f32 v{E256}, v60, v62
          v_mul_f32 v{E256+1}, v60, v63
          v_mul_f32 v{E1}, v48, v54
          v_mul_f32 v{E1+1}, v48, v55""")
    TB = [48, 56]
    A_YF, A_XF = 112, 144
    def flush(batch):
        p("s_mov_b32 m0, s76")
        for (reg, row) in batch: p(f"ds_write_addtid_b32 v{reg} offset:{272*row}")
    groups = chunks(dmas, 4)
    def after_batch(k):
        if k >= 8 - NEARLY and groups:
            for b in groups.pop(0):
                for i in b: p.add(i)
            p(".p2align 3")
    p(".p2align 3")
    cur = E8; ping = [128, 130]
    for bt in range(4):
        T = TB[bt & 1]; batch = []
        for jj in range(8):
            j = 8 * bt + jj
            if j == 0: p(f"v_mov_b32 v{T}, 0x3f80")
            elif j == 1: p(f"v_cvt_pk_bf16_f32 v{T+1}, v{E8}, v{E8+1}")
            else:
                d = ping[j & 1]
                for i in cmul(d, cur, E8): p(i)
                p(f"v_cvt_pk_bf16_f32 v{T+jj}, v{d}, v{d+1}")
                cur = d
            batch.append((T + jj, j))
        flush(batch)
        if bt == 3:
            for s in range(8): p(f"ds_read_b128 a[{A_YF+4*s}:{A_YF+4*s+3}], v15 offset:{32*s}")
        after_batch(bt)
    rows = {}
    lists = [[0,1,2,3, 256,258,260,None, 512,516,520,None, 1024,1032,1280,1288],
             [4,5,6,7, 260,262,264,None, 768,772,776,None, 1536,1544,1792,1800]]
    for hh in range(2):
        for k, pos in enumerate(lists[hh]):
            if pos is not None: rows.setdefault(pos, []).append(8 * (k >> 2) + 4 * hh + (k & 3))
    xr = {0: C0}
    seq = [(0, None, None)]
    for pos in range(1, 9): seq.append((pos, pos - 1, E1))
    for base in range(256, 2048, 256):
        offs = (0, 2, 4, 6, 8) if base == 256 else ((0, 4, 8) if base < 1024 else (0, 8))
        for o in offs: seq.append((base + o, base - 256 + o, E256))
    free = list(range(132, 200, 2))
    batch = []; nb = 0; cnt = 0
    for idx, (pos, src, e) in enumerate(seq):
        if src is not None:
            d = free.pop(0); xr[pos] = d
            for i in cmul(d, xr[src], e): p(i)
        if pos in rows:
            T = TB[nb & 1] + cnt; cnt += 1
            p(f"v_cvt_pk_bf16_f32 v{T}, v{xr[pos]}, -v{xr[pos]+1}")
            for m in rows[pos]: batch.append((T, m))
        if cnt == 7 or idx == len(seq) - 1:
            flush(batch); batch = []; cnt = 0
            if idx == len(seq) - 1:
                for s in range(8): p(f"ds_read_b128 a[{A_XF+4*s}:{A_XF+4*s+3}], v47 offset:{32*s}")
            after_batch(4 + nb); nb += 1
    if main: stamp("chains done")
    KD = 112
    kmf = [f"v_mfma_f32_32x32x16_bf16 v[{KD}:{KD+15}], a[{A_XF+4*s}:{A_XF+4*s+3}], a[{A_YF+4*s}:{A_YF+4*s+3}], {'0' if s == 0 else f'v[{KD}:{KD+15}]'}" for s in range(8)]
    rest = [b for g in groups for b in g]
    def dma1():
        if rest:
            for i in rest.pop(0): p.add(i)
    tag = "m" if main else "h"
    pre = L(f"""v_add_u32 v14, s36, v{V_L16}
              v_add_u32 v10, s37, v{V_L16}
              v_lshl_add_u32 v12, v8, 4, s77
              v_lshl_add_u32 v13, v9, 3, v12
              v_lshl_add_u32 v11, v9, 9, v12
              v_lshl_add_u32 v15, v9, 10, v12
              v_cmp_eq_u32 vcc, 0, v1
              s_nop 0
              v_and_b32 v12, 1, v1
              v_cndmask_b32 v46, 0, v46, vcc
              v_cmp_eq_u32 vcc, 1, v12
              v_and_b32 v47, 15, v1
              v_lshl_add_u32 v47, v47, 2, s77""")
    nbar = len(rest) - nafter
    for k in range(8):
        p(kmf[k])
        if len(rest) > nafter: dma1()
        for _ in range(2):
            if pre: p(pre.pop(0))
    while len(rest) > nafter: dma1()
    for i in range(2): p(f"ds_write_b128 v14, v[{KD+8+4*i}:{KD+11+4*i}] offset:{1024*i}")
    p("s_waitcnt lgkmcnt(0)\ns_barrier")
    for i in range(2): p(f"ds_read_b128 v[{48+4*i}:{51+4*i}], v10 offset:{1024*i}")
    dma1(); dma1()
    for i in range(0, 8, 2): p(f"v_pk_add_f32 v[{KD+i}:{KD+i+1}], v[{KD+i}:{KD+i+1}], v[{48+i}:{49+i}]")
    k_ = lambda i: f"v{KD+i}"
    p(f"""s_cmp_lg_u32 s28, 0
          s_cbranch_scc1 L_kodd{tag}
          v_add_f32 {k_(0)}, {k_(0)}, v46
          v_cvt_pk_bf16_f32 v49, {k_(2)}, {k_(3)}
          v_cvt_pk_bf16_f32 v48, {k_(0)}, {k_(1)}
          v_cvt_pk_bf16_f32 v50, {k_(4)}, {k_(4)}
          v_cvt_pk_bf16_f32 v51, {k_(5)}, {k_(6)}
          ds_write_b64 v13, v[48:49] offset:64
          ds_write_b64 v13, v[50:51] offset:{64+512}
          ds_write_b32 v47, v{V_ZERO}
          s_branch L_kdone{tag}
          L_kodd{tag}:
          v_cvt_pk_bf16_f32 v52, {k_(0)}, {k_(0)}
          v_cvt_pk_bf16_f32 v53, {k_(0)}, {k_(1)}
          v_cvt_pk_bf16_f32 v54, {k_(1)}, {k_(1)}
          v_cvt_pk_bf16_f32 v55, {k_(2)}, {k_(2)}""")
    for b in range(2):
        v, vn = k_(4 + 2*b), k_(5 + 2*b); r = 56 + 4*b
        p(f"""v_cndmask_b32 v12, {v}, {vn}, vcc
              v_cvt_pk_bf16_f32 v{r}, {v}, {v}
              v_cvt_pk_bf16_f32 v{r+1}, {v}, {v}
              v_cvt_pk_bf16_f32 v{r+2}, v12, {vn}
              v_cvt_pk_bf16_f32 v{r+3}, {vn}, {vn}""")
    p(f"""ds_write_b128 v11, v[52:55] offset:{64+1024}
          ds_write_b128 v15, v[56:59] offset:{64+2048}
          ds_write_b128 v15, v[60:63] offset:{64+2048+512}
          L_kdone{tag}:""")
    return rest, dma1
p("s_cmp_lg_u32 s75, 0\ns_cbranch_scc1 L_helper1")
pf2 = [["s_add_u32 s91, s91, %d" % (256*3584), "buffer_load_dword a255, v44, s[8:11], s91 offen"], ["buffer_load_dword a253, v45, s[4:7], s90 offen offset:512"]] if PFH else []
rest, dma1 = kgen(p, dma_bundles(0) + dma_bundles(1) + pf2, opt("early", 0), True, opt("nafter", 12 + len(pf2)))
KWG = opt("kwg", 1)
NPRE = opt("npre", 20)
while len(rest) > 24 + len(pf2) - max(NPRE, 12): dma1()
p(nonce_ld)
stamp("pre-G1 DMA issued")
p("s_waitcnt lgkmcnt(0)")
p.wait_vm(tk["D0"])
p("s_barrier")
stamp("G1 start")
G = Gaps(256)
def sg(st, a=0): return 32 * st + a
BG = 26
RDG = [int(c) for c in OPT.get("rdg", "01346")]
for q in range(31):
    s_ = q & 3
    for i in ([1, 2, 3, 4, 5] if s_ == 3 else RDG): G.base[8 * q + i] += ["ds_read_b128 x", "ds_read_b128 x"]
    G.base[8 * q + 7] += ["s_waitcnt"]; G.base[8 * q + 3] += ["s_waitcnt"]
    if s_ == 3: G.base[8 * q + 1] += ["s_waitcnt", "s_waitcnt", "s_barrier"]
nr = len(rest)
pc = L(f"""s_mov_b32 s20, s60
      s_mov_b32 s21, s61
      s_mov_b32 s22, 0x200000
      s_mov_b32 s23, 0x20000
      s_lshl_b32 s41, s24, 10
      s_add_u32 s41, s41, {F1_OFF}
      s_lshl_b32 s79, s33, 6
      s_lshl_b32 s69, s29, 5
      s_add_u32 s79, s79, s69
      s_mov_b32 s16, s56
      s_mov_b32 s17, s57
      s_mov_b32 s18, {1792*1024}
      s_mul_i32 s69, s24, 28
      s_xor_b32 s42, s34, s33
      s_and_b32 s42, s42, {opt("rot2", 1)}
      s_mul_i32 s42, s42, 14
      s_add_u32 s69, s69, s42
      s_lshl_b32 s80, s69, 14
      s_lshl_b32 s68, s34, 7
      s_add_u32 s80, s80, s68
      s_lshl_b32 s46, s42, 15
      s_lshl_b32 s42, s42, 11
      s_lshl_b32 s81, s24, 12
      v_bfe_u32 v14, v6, 1, 1
      v_lshlrev_b32 v14, 2, v14
      v_xor_b32 v14, v14, v7
      v_lshlrev_b32 v14, 4, v14
      v_lshl_add_u32 v{V_W2O}, v6, 10, v14
      v_add_u32 v{V_W2O+1}, 7168, v{V_W2O}
      v_add_u32 v{V_W2O+2}, {2*7168}, v{V_W2O}
      v_add_u32 v{V_W2O+3}, {3*7168}, v{V_W2O}
      v_and_b32 v14, 1, v3
      v_lshl_add_u32 v14, v14, 2, v5
      v_lshrrev_b32 v15, 1, v14
      v_and_b32 v14, 1, v14
      v_lshlrev_b32 v14, 5, v14
      v_lshl_add_u32 v14, v15, 3, v14
      v_lshl_add_u32 v15, v9, 3, v4
      v_lshl_add_u32 v14, v15, 7, v14
      v_lshrrev_b32 v15, 1, v4
      v_xor_b32 v15, s28, v15
      v_lshl_add_u32 v{V_W2A}, v15, 6, v14
      v_xor_b32 v{V_W2B}, 64, v{V_W2A}
      v_add_u32 v{V_W2A}, s81, v{V_W2A}
      v_add_u32 v{V_W2B}, s81, v{V_W2B}
      v_add_u32 v58, 0x10000, v{V_W2A}
      v_add_u32 v59, 0x10000, v{V_W2B}
      s_mul_i32 s88, s33, 224
      s_add_u32 s88, s88, s69
      s_lshl_b32 s88, s88, 10
      s_add_u32 s88, s88, {H_OFF}
      s_add_u32 s89, s88, {14*1024}
      s_sub_u32 s89, s89, s42
      s_lshr_b32 s43, s87, 3
      s_lshl_b32 s43, s43, 11
      s_bfe_u32 s69, s87, 0x20001
      s_lshl_b32 s69, s69, 8
      s_add_u32 s43, s43, s69
      s_and_b32 s69, s87, 1
      s_lshl_b32 s69, s69, 5
      s_add_u32 s43, s43, s69
      s_lshl_b32 s69, s24, 19
      s_add_u32 s43, s43, s69
      s_add_u32 s43, s43, {U4T_OFF}
      s_add_u32 s39, s43, {4*65536 - 1024}
      s_lshl_b32 s44, s24, 11
      s_add_u32 s44, s44, {UB + 1024}
      v_bfe_u32 v14, v1, 1, 2
      v_lshlrev_b32 v14, 6, v14
      v_and_b32 v15, 1, v6
      v_lshl_add_u32 v14, v15, 10, v14
      v_lshl_add_u32 v14, v3, 16, v14
      v_and_b32 v15, 1, v1
      v_lshl_add_u32 v15, v15, 4, v14
      s_lshl_b32 s68, s28, 8
      s_sub_u32 s68, {UB + 384}, s68
      s_lshl_b32 s69, s29, 4
      s_add_u32 s68, s68, s69
      v_lshlrev_b32 v{V_UF}, 5, v8
      v_lshl_add_u32 v{V_UF}, v9, 7, v{V_UF}
      v_add_u32 v{V_UF}, s68, v{V_UF}
      s_lshl_b32 s38, s24, 8
      s_add_u32 s38, s38, {UB}
      s_lshl_b32 s69, s25, 1
      s_add_u32 s69, s69, s29
      s_mul_i32 s45, s69, 224
      s_lshl_b32 s68, s26, 1
      s_add_u32 s68, s68, s28
      s_mul_i32 s52, s68, 37
      s_lshr_b32 s52, s52, 8
      s_mul_i32 s52, s52, 100
      s_lshl_b32 s51, s69, 9
      s_add_u32 s51, s51, s52
      s_lshl_b32 s52, s68, 2
      s_add_u32 s51, s51, s52
      s_cmp_lg_u32 s75, 0
      s_cselect_b32 s51, 0x4000, s51
      s_add_u32 s51, s51, {F2_OFF}
      s_lshl_b32 s68, s68, 2
      s_add_u32 s45, s45, s68
      s_lshl_b32 s45, s45, 10
      s_add_u32 s45, s45, {H_OFF}
      s_add_u32 s45, s45, s75
      s_add_u32 s50, s45, {112*1024}
      s_lshl_b32 s52, s33, 2
      s_add_u32 s52, s52, s24
      s_lshl_b32 s52, s52, 7
      s_add_u32 s52, s52, {F2_OFF}
      s_lshl_b32 s53, s24, 13
      s_add_u32 s53, s53, {EX}
      s_lshl_b32 s54, s24, 10
      s_add_u32 s54, s54, {EX}
      s_lshl_b32 s55, s87, 14
      s_lshl_b32 s69, s24, 11
      s_add_u32 s55, s55, s69
      s_add_u32 s55, s55, {A2_OFF}
      s_add_u32 s40, s55, 8192
      s_lshl_b32 s56, s34, 5
      s_lshl_b32 s68, s28, 4
      s_add_u32 s56, s56, s68
      s_lshl_b32 s56, s56, 14
      s_lshl_b32 s68, s79, 3
      s_add_u32 s56, s56, s68
      s_add_u32 s56, s56, {A2_OFF}
      s_lshl_b32 s57, s79, 3
      s_add_u32 s57, s57, {G_OFF}
      s_lshl_b32 s84, s79, 10
      s_lshl_b32 s68, s34, 7
      s_add_u32 s84, s84, s68
      s_lshl_b32 s68, s28, 6
      s_add_u32 s84, s84, s68
      s_mov_b32 s48, {NLOG2E:#x}
      s_mov_b32 s49, {NLOG2E:#x}
      s_mul_i32 s68, s29, {112*1024}
      s_sub_u32 s69, {112*1024}, s68
      v_add_u32 v{V_HA}, s68, v{V_L16}
      v_add_u32 v{V_HB}, s69, v{V_L16}
      v_lshlrev_b32 v0, 7, v7
      v_lshlrev_b32 v3, 3, v8
      v_lshl_add_u32 v3, v9, 17, v3
      v_lshlrev_b32 v4, 3, v8
      v_lshlrev_b32 v5, 10, v8
      v_lshl_add_u32 v5, v9, 5, v5
      v_mov_b32 v6, {BIG:#x}""")
V_F1, V_F2, V_AO, V_GO, V_OUT = 0, 2, 3, 4, 5
def pcb(lst):
    o = []
    for x in lst:
        if x.startswith("s_cselect"): o[-1].append(x)
        else: o.append([x])
    return o
f1_ld = f"buffer_load_dword v44, v{V_F1}, s[12:15], s41 offen{SC}"
f1_cmp = f"v_cmp_ne_u32 vcc, s{S_NONCE}, v44"
F1L, F1C = opt("f1l", sg(5, 2)), opt("f1c", sg(5, 24))
u_items = [["s_mov_b32 m0, s38", "s_nop 0", "buffer_load_dword v6, s[12:15], 0 offen lds"], ["s_mov_b32 m0, s44", "s_nop 0", f"buffer_load_dwordx4 v15, s[12:15], s43 offen{SC} lds"],
           [f"buffer_load_dwordx4 v15, s[12:15], s39 offen offset:1024{SC} lds"]]
def w2dma(slot, last=False):
    b = [[f"s_add_u32 m0, s81, {16384*slot}", "s_nop 0", f"buffer_load_dwordx4 v{V_W2O}, s[16:19], s80 offen lds"]]
    b += [[f"buffer_load_dwordx4 v{V_W2O+i}, s[16:19], s80 offen offset:{1024*i} lds"] for i in range(1, 4)]
    b[-1] = b[-1] + ["s_add_u32 s80, s80, 32768"] + (["s_sub_u32 s80, s80, s46"] if last else [])
    return b
HIB = [58]
def slotaddr(slot, t): return (V_W2A + t, 16384 * slot) if slot < 4 else (HIB[0] + t, 16384 * (slot - 4))
def w2rd(g, slot):
    o = []
    for u in range(2):
        for t in range(2):
            va, off = slotaddr(slot, t)
            o += [f"ds_read_b64_tr_b16 a[{A_W2+16*g+8*u+4*t+2*hh}:{A_W2+16*g+8*u+4*t+2*hh+1}], v{va} offset:{off + 2048*u + 512*hh}" for hh in range(2)]
    return o
def tg(g): return touch(f"a[{A_W2+16*g}:{A_W2+16*g+15}]")
early_st = [int(c) for c in OPT.get("est", "35") if c.isdigit()]
W2G = {st: k for k, st in enumerate(early_st)}
NG1 = min(7, len(early_st) + opt("nlate", 5))
late = list(range(len(early_st), NG1))
assert len(late) <= 5 and all(st >= 2 for st in early_st)
kf_reads = []
for s in range(16):
    kf_reads.append(f"ds_read_b64_tr_b16 a[{A_KF+4*s}:{A_KF+4*s+1}], v{V_KF} offset:{256*s + 32}")
    kf_reads.append(f"ds_read_b64_tr_b16 a[{A_KF+4*s+2}:{A_KF+4*s+3}], v{V_KF} offset:{256*s}")
uf_reads = [f"ds_read_b128 a[{A_UF+4*s}:{A_UF+4*s+3}], v{V_UF} offset:{512*s}" for s in range(16)]
G.put(F1C, [poll_check([f1_ld], [], f1_cmp)]); G.put(sg(2, 21), [nonce_check()])
PFG = opt("pfg", 6)
e_ = G.spread(rest, 0, 2 * nr + 1) if rest else -1
D2E = opt("d2e", BG + 2 * nr)
G.spread(dma_bundles(2), e_ + 1 + (PFG if pf2 else 0), D2E)
rdq = []
for st in range(3, 8):
    lo = D2E if st == 3 else sg(st - 3, BG)
    db = dma_bundles(st)
    cs = st - 2
    if cs in W2G:
        g = W2G[cs]
        wd = w2dma(2)
        if g: wd[0] = [tg(g - 1)] + wd[0]
        wd[-1] = wd[-1] + [mark(f"WG{g}")]
        db = db[:4] + wd + db[4:]
        rd = chunks(w2rd(g, 2), 1); rd[0] = [waitvm(f"WG{g}")] + rd[0]
        tight = (cs + 1) in W2G
        rdq.append((rd, sg(cs, BG + (2 if tight else 14)), sg(cs, BG + (8 if tight else 28))))
    G.spread(db, lo, sg(cs, BG))
G.spread([f1_ld], F1L, F1L + 6)
G.spread([u_items[0], u_items[1], u_items[2] + [mark("U4")]], sg(5, BG), sg(5, BG + 7))
LG0 = sg(5, BG + 7)
step_g = opt("lgs", 12); LGW = opt("lgw", 24)
spill = []; last_user = {}
if early_st: last_user[2] = len(early_st) - 1
for k, g in enumerate(late):
    slot = k
    wd = w2dma(slot, last=(g == 6))
    if slot in last_user: wd[0] = [tg(last_user[slot])] + wd[0]
    last_user[slot] = g
    wd[-1] = wd[-1] + [mark(f"WG{g}")]
    g0 = LG0 + step_g * k
    assert slot < 3 or g0 >= sg(6, BG)
    assert g0 + step_g <= 256
    G.spread(wd, g0, g0 + step_g)
    gr = g0 + step_g + LGW
    if gr + 6 <= 255:
        rd = chunks(w2rd(g, slot), 1); rd[0] = [waitvm(f"WG{g}")] + rd[0]
        rdq.append((rd, gr, gr + 6))
    else: spill.append((g, slot))
NL1 = min(opt("nl1", 5), 5 - len(late))
l1_slots = list(range(len(late), len(late) + NL1))
for k, slot in enumerate(l1_slots):
    wd = w2dma(slot)
    if slot in last_user: wd[0] = [tg(last_user[slot])] + wd[0]
    wd[-1] = wd[-1] + [mark(f"WL{k}")]
    g0 = LG0 + step_g * (len(late) + k)
    assert slot < 3 or g0 >= sg(6, BG)
    assert g0 + step_g <= 256
    G.spread(wd, g0, g0 + step_g)
for rd, a_, b_ in rdq: G.spread(rd, a_, b_)
G.spread(kf_reads, sg(0, 2), sg(1, 25))
G.spread(uf_reads, sg(6, BG + 2), sg(7, 30))
e1 = G.spread(pc[:53], sg(0, 4), sg((early_st[0] if early_st else 4) - 1, 24)); G.spread(pcb(pc[53:]), e1 + 1, sg(4, 26))
RPF = opt("rpf", sg(6, 5))
if RPF: G.spread(["v_accvgpr_read_b32 v14, a252", "global_load_dword a254, v14, s[66:67]"], RPF, RPF + 6)
NOBAR = False
for i in frag_reads(0): p(i)
for q in range(32):
    st, s = q >> 2, q & 3; b = q & 1
    nxt = frag_reads(q + 1) if q < 31 else []
    for i in range(8):
        t, lt = i >> 1, i & 1
        if i == 0: p.touch(f"v[{XF[b]}:{XF[b]+7}]", f"v[{WF[b]}:{WF[b]+7}]")
        if i == 4: p.touch(f"v[{WF[b]+8}:{WF[b]+15}]")
        a = ACC1 + 16 * (4 * lt + t)
        c = "0" if q == 0 else f"v[{a}:{a+15}]"
        p(f"v_mfma_f32_32x32x16_bf16 v[{a}:{a+15}], v[{WF[b]+4*t}:{WF[b]+4*t+3}], v[{XF[b]+4*lt}:{XF[b]+4*lt+3}], {c}")
        gi = 8 * q + i
        if s == 3 and q < 31:
            if i <= 1:
                for x in G.items(gi): p.add(x)
            if i == 1:
                p("s_waitcnt lgkmcnt(0)")
                p.wait_vm(tk[f"D{st+1}"])
                if st == 6: p.wait_vm(tk["U4"])
                if not NOBAR: p("s_barrier")
                if STAMPS and "allst" in OPT: stamp(f"G1 barrier {st}->{st+1}")
            if i >= 1:
                for _ in range(2):
                    if nxt: p(nxt.pop(0))
            if i >= 2:
                for x in G.items(gi): p.add(x)
        else:
            if i in RDG:
                for _ in range(2):
                    if nxt: p(nxt.pop(0))
            for x in G.items(gi): p.add(x)
    assert not nxt
p("s_waitcnt lgkmcnt(0)\ns_barrier")
stamp("G1 end")
post = [(g, 5 + k) for k, g in enumerate(range(NG1, 7))]
assert len(post) <= 2 and not (post and NL1)
for g, sl in post: last_user[sl] = g
sp_slots = [sl for _, sl in spill] + [sl for _, sl in post]
LSLOT = l1_slots + [sl for sl in [5, 6, 0, 1, 2, 3, 4] if sl not in sp_slots + l1_slots] + sp_slots
vq = []
for g, sl in post:
    wd = w2dma(sl, last=(g == 6)); wd[-1] = wd[-1] + [mark(f"WG{g}")]; vq += wd
for g in range(NL1, 7):
    wd = w2dma(LSLOT[g])
    if LSLOT[g] in sp_slots: wd[0] = [tg(last_user[LSLOT[g]])] + wd[0]
    wd[-1] = wd[-1] + [mark(f"WL{g}")]
    vq += wd
NC1 = opt("nc1", 0)
assert NC1 % 4 == 0
c1q = vq[:NC1]; vq = vq[NC1:]
c1_all = list(c1q)
NS1 = opt("ns1", 8)
hst = []
nst_done = 0
for ti in range(8):
    lt, t = ti >> 2, ti & 3
    a = ACC1 + 16 * ti
    T = 64 + 8 * (ti & 1); O = a + 4
    gp = [a, a + 2, a + 8, a + 10]; up = [a + 4, a + 6, a + 12, a + 14]
    p(".p2align 3")
    for i in range(4): p(f"v_pk_mul_f32 v[{T+2*i}:{T+2*i+1}], v[{gp[i]}:{gp[i]+1}], s[48:49]")
    for i in range(8): p(f"v_exp_f32 v{T+i}, v{T+i}")
    n = (len(c1_all) * (2 * ti + 1)) // 16 - (len(c1_all) * 2 * ti) // 16
    for _ in range(n):
        for i in c1q.pop(0): p.add(i)
    if n: p(".p2align 3")
    for i in range(4): p(f"v_pk_mul_f32 v[{gp[i]}:{gp[i]+1}], v[{gp[i]}:{gp[i]+1}], v[{up[i]}:{up[i]+1}]")
    for i in range(4): p(f"v_pk_add_f32 v[{T+2*i}:{T+2*i+1}], v[{T+2*i}:{T+2*i+1}], 1.0 op_sel_hi:[1,0]")
    for i in range(8): p(f"v_rcp_f32 v{T+i}, v{T+i}")
    for i in range(4): p(f"v_pk_mul_f32 v[{gp[i]}:{gp[i]+1}], v[{gp[i]}:{gp[i]+1}], v[{T+2*i}:{T+2*i+1}]")
    for i in range(4): p(f"v_cvt_pk_bf16_f32 v{O+i}, v{gp[i]}, v{gp[i]+1}")
    hst.append(f"buffer_store_dwordx4 v[{O}:{O+3}], v{V_L16}, s[12:15], {'s45' if lt == 0 else 's50'} offen offset:{1024*t}{SC}")
    while nst_done < min(ti + 1, -(-NS1 * (ti + 1) // 8)):
        p(hst[nst_done]); nst_done += 1
    n = (len(c1_all) * (2 * ti + 2)) // 16 - (len(c1_all) * (2 * ti + 1)) // 16
    for _ in range(n):
        for i in c1q.pop(0): p.add(i)
hst = hst[nst_done:]
if not hst: tk["H"] = p.mark()
p("L_cjoin:")
stamp("C1 end")
CA = [64, 80, 96]
MM = []; tile_end = []
for tau in range(8):
    a = CA[tau % 3]
    for sp in range(2 * tau + 2):
        v2 = 2 * tau - sp + 1
        c = "0" if sp == 0 else f"v[{a}:{a+15}]"
        MM.append(f"v_mfma_f32_32x32x16_bf16 v[{a}:{a+15}], a[{A_UF+4*v2}:{A_UF+4*v2+3}], a[{A_KF+4*sp}:{A_KF+4*sp+3}], {c}")
    tile_end.append(len(MM))
P2 = [112, 113, 114, 115]; P1 = [116, 117, 118, 119]; ZS = 47
dm = "row_mask:0xf bank_mask:0xf"
def shift_add(tau):
    a = CA[tau % 3]; Y = [120, 124, 20, 24, 28, 32, 48, 52][tau]; o = []
    z = lambda qd, j: a + 4 * qd + j
    if tau == 0:
        o += [f"v_mov_b32 v{P1[0]}, v{z(0,1)}", f"v_mov_b32 v{Y}, v{z(0,0)}", f"v_mov_b32 v{P2[0]}, v{z(0,2)}"]
    else:
        o += [f"v_add_f32_dpp v{P1[0]}, v{P2[3]}, v{z(0,1)} wave_ror:1 {dm}", f"v_add_f32_dpp v{Y}, v{P1[3]}, v{z(0,0)} wave_ror:1 {dm}",
              f"v_add_f32_dpp v{P2[0]}, v{ZS}, v{z(0,2)} wave_ror:1 {dm}"]
    o += [f"v_add_f32_dpp v{P2[q]}, v{z(q-1,3)}, v{z(q,2)} wave_ror:1 {dm}" for q in range(1, 4)]
    o += [f"v_add_f32_dpp v{P2[q]}, v{z(q,3)}, v{z(q,2)} wave_shr:1 {dm}" for q in range(4)]
    if tau < 7: o += [f"v_mov_b32 v{ZS}, v{z(3,3)}"]
    o += [f"v_add_f32_dpp v{P1[q]}, v{P2[q-1]}, v{z(q,1)} wave_ror:1 {dm}" for q in range(1, 4)]
    o += [f"v_add_f32_dpp v{P1[q]}, v{P2[q]}, v{z(q,1)} wave_shr:1 {dm}" for q in range(4)]
    o += [f"v_add_f32_dpp v{Y+q}, v{P1[q-1]}, v{z(q,0)} wave_ror:1 {dm}" for q in range(1, 4)]
    o += [f"v_add_f32_dpp v{Y+q}, v{P1[q]}, v{z(q,0)} wave_shr:1 {dm}" for q in range(4)]
    o.append(f"ds_write_b128 v14, v[{Y}:{Y+3}] offset:{1024*tau}")
    return o
HR = 128
ACC = [f"v[240:255]", "a[176:191]", "a[192:207]", "a[208:223]"]
A_WL = 112; WLN = 14
horder = [(st, k) for st in range(14) for k in range(2)] + [(st, 1) for st in range(14, 28)] + [(st, 0) for st in range(14, 28)]
hpos = {x: i for i, x in enumerate(horder)}
def hfr(step, k): return HR + 4 * (hpos[(step, k)] % 28)
def wfr(step, t):
    if step < 14: return A_W2 + 8 * step + 4 * t
    if step < 22: return A_WL + 8 * (step - 14) + 4 * t
    return A_W2 + 8 * (step - 22) + 4 * t
def g2m(s, c):
    t, lt = c & 1, c >> 1
    return f"v_mfma_f32_32x32x16_bf16 {ACC[c]}, a[{wfr(s,t)}:{wfr(s,t)+3}], v[{hfr(s,lt)}:{hfr(s,lt)+3}], {'0' if s == 0 else ACC[c]}"
NDEF = opt("ndef", 6)
g2seq = [(st, c) for st in range(14) for c in range(4)] + [(st, c) for st in range(14, 28) for c in (2, 3)]
for st in range(14, 28): g2seq += [(st, 1)] + ([(st, 0)] if st < 28 - NDEF else [])
g2seq += [(st, 0) for st in range(28 - NDEF, 28)]
first_use = {}; last_use = {}; step_first = {}
for i, (st, c) in enumerate(g2seq):
    first_use.setdefault((st, c >> 1), 72 + i); last_use[(st, c >> 1)] = 72 + i; step_first.setdefault(st, 72 + i)
NG = 72 + 112
C = Gaps(NG)
p(f"v_add_u32 v14, s53, v{V_L16}\nv_mov_b32 v16, v58\nv_mov_b32 v17, v59")
HIB[0] = 16
assert not hst
F2G, F2P, F2C = opt("f2g", 22), opt("f2p", 40), opt("f2c", 58)
win = [(4, 11), (11, 18), (18, 26), (26, 34), (34, 44), (45, 57), (59, 71), (75, 86)]
C.put(F2G, ST("pre H ack") + [waitvm("H"), "s_waitcnt lgkmcnt(0)", f"s_mov_b32 s90, s{S_NONCE}", "s_atomic_swap s90, s[64:65], s51"] + ST("H acked"))
f2_ld = "s_load_dwordx8 s[4:11], s[64:65], s52 glc"
f2_cmp = [f"s_xor_b32 s{i}, s{i}, s{S_NONCE}" for i in range(4, 11)] + ["s_or_b32 s4, s4, s5", "s_or_b32 s6, s6, s7", "s_or_b32 s8, s8, s9", "s_or_b32 s4, s4, s6", "s_or_b32 s8, s8, s10"]
def f2_test(pp):
    if STAMPS: pp("s_mov_b32 s95, 0")
    pp("s_or_b32 s4, s4, s8\ns_cbranch_scc1 L_slowf2\nL_backf2:")
    if STAMPS: pp(f"v_writelane_b32 v{V_TS}, s95, 63")
f2_test.cost = 12; f2_test.alu = True
slow(f"""L_slowf2:
         s_mov_b32 s95, 0
         L_slowf2loop:
         {f2_ld}
         s_waitcnt lgkmcnt(0)
         s_add_u32 s95, s95, 1
         s_cmp_ge_u32 s95, {SPIN_MAX}
         s_cbranch_scc1 L_backf2""")
for x in f2_cmp: slow(x)
slow("s_or_b32 s4, s4, s8\ns_cbranch_scc1 L_slowf2loop\ns_branch L_backf2")
C.put(F2P, [f2_ld])
C.alu[F2C - 2] += ST("pre F2 check") + f2_cmp[:5]; C.alu[F2C - 1] += f2_cmp[5:10]; C.alu[F2C] += f2_cmp[10:] + [f2_test] + ST("F2 ok")
agr_end = 0
for k, (g, slot) in enumerate(spill):
    rd = chunks(w2rd(g, slot), 1); rd[0] = [waitvm(f"WG{g}")] + rd[0]
    agr_end = C.spread(rd, agr_end, 4 + 6 * k)
    assert agr_end < F2G - 1
n_free = len(vq) - 4 * len(sp_slots)
assert n_free >= 0
AGR = opt("agr", 40); pr_end = AGR
for k, (g, slot) in enumerate(post):
    rd = chunks(w2rd(g, slot), 1); rd[0] = [waitvm(f"WG{g}")] + rd[0]
    pr_end = C.spread(rd, max(pr_end, AGR + 4 * k), AGR + 4 * k + 6)
VQ0, VQ1 = opt("vq0", 1), opt("vqend", F2C); nv = len(vq); cur = VQ0
for k in range(0, nv, 4):
    lo = VQ0 + (k * (VQ1 - VQ0)) // nv; hi = VQ0 + (min(k + 4, nv) * (VQ1 - VQ0)) // nv
    if k + 4 > n_free: lo = max(lo, agr_end + 1)
    if post and k + 4 > nv - 4 * len(post): lo = max(lo, pr_end + 1)
    lo = max(lo, cur); hi = max(hi, lo + 5)
    if post and NC1 + k < 4 * len(post): assert hi < AGR
    cur = C.spread(vq[k:k+4], lo, hi) + 1
assert cur <= 72, cur
hb = []
for i, (step, k2) in enumerate(horder):
    pre = []
    if step < 14:
        if k2 == 0 and step % 4 == 0 and step: pre.append("s_add_u32 s88, s88, 4096")
        off = 1024 * (step % 4)
    else:
        j = step - 14
        if j == 0: pre.append("s_mov_b32 s88, s89")
        elif j % 4 == 0: pre.append("s_add_u32 s88, s88, 4096")
        off = 1024 * (j % 4)
    hb.append(pre + [f"buffer_load_dwordx4 v[{hfr(step,k2)}:{hfr(step,k2)+3}], v{V_HA+k2}, s[12:15], s88 offen offset:{off}{SC}"])
NH0 = opt("nh0", 10)
C.spread(hb[:NH0], F2C + 1, 72, exact=True)
C.alu[71] += ST("G2 start")
for i in range(NH0, 56):
    g = first_use[horder[i - NH0]]
    if i >= 28: assert g >= last_use[horder[i - 28]]
    C.put(g, hb[i]); C.vm.add(g); lasth = g
HYB = opt("hyb", 0)
EW = opt("ew", 73)
if HYB:
    E0 = opt("e0", 36)
    ewg = [E0 + 2 * t for t in range(4)] + [EW + 2 * t for t in range(4)]
else: ewg = [EW + 2 * t for t in range(8)]
if HYB: win[7] = (75, 83)
ewg[7] = max(ewg[7], win[7][1] | 1)
for tau in range(8):
    assert ewg[tau] >= win[tau][1]
    C.put(ewg[tau], shift_add(tau)[-1:])
C.spread(["v_lshlrev_b32 v18, 3, v1", f"v_add_u32 v19, s54, v{V_L16}"], 0, 4)
def exch(bt, R, O):
    exr = [f"ds_read_b128 v[{R+4*src}:{R+3+4*src}], v19 offset:{8192*src + 4096*bt}" for src in range(4)]
    ax = [f"v_add_f32 v{R+8*c+i}, v{R+8*c+i}, v{R+8*c+4+i}" for c in range(2) for i in range(4)]
    ax += [f"v_cvt_pk_bf16_f32 v{O+2*qd}, v{R+qd}, v{R+8+qd}" for qd in range(4)]
    nz = [f"v_mov_b32 v{O+1+2*i}, v{V_NONCE}" for i in range(4)]
    ast = [f"buffer_store_dwordx2 v[{O+2*i}:{O+1+2*i}], v18, s[12:15], {'s55' if bt == 0 else 's40'} offen offset:{512*i}{SC}" for i in range(4)]
    return exr, ax, nz, ast
XB = ewg[7] + 2
if HYB:
    X0 = ewg[3] + 3
    exr, ax, nz, ast = exch(0, 240, 232)
    C.put(X0, ["s_waitcnt lgkmcnt(0)", "s_barrier"])
    C.spread(exr, X0, X0 + 3)
    XS0 = opt("xs0", X0 + 10)
    C.spread(ast, XS0, XS0 + 8)
    a0 = (nz + ax, X0 + 3, XS0)
    exr, ax, nz, ast = exch(1, 64, 56)
else:
    e1_, a1_, n1_, t1_ = exch(0, 64, 48); e2_, a2_, n2_, t2_ = exch(1, 80, 56)
    exr, ax, nz, ast = e1_ + e2_, a1_ + a2_, n1_ + n2_, t1_ + t2_
for tau in range(8):
    g0, g1 = win[tau]
    assert g0 > tile_end[tau] and (tau + 2 > 7 or g1 <= tile_end[tau + 2])
    C.spread(shift_add(tau)[:-1], g0, g1)
if HYB: assert C.spread(*a0) < XS0
C.put(XB, ["s_waitcnt lgkmcnt(0)", "s_barrier"])
C.spread(exr, XB, XB + 4)
C.spread(nz, XB + 1, XB + 5)
e_ = C.spread(ax, XB + 6, XB + 6 + len(ax) // 3)
XS = opt("xs", e_ + 1); XSN = opt("xsn", 2)
assert XS > e_
for i, x in enumerate(ast): C.put((XS + i * XSN) | 1, [x])
su = []
for c in range(4): su += [f"s_xor_b32 s69, s24, {c}", "s_mul_i32 s69, s69, 12288", f"s_add_u32 s69, s69, {RB}", f"v_add_u32 v{24+c}, s69, v{V_L16}"]
for i in range(1, 8): su.append(f"v_add_u32 v{27+i}, {16384*i}, v{V_AO}")
C.spread(su, XB + 14, XB + 40)
C.put(XB + 30, ["s_barrier"])
WR0 = opt("wr0", 104); cur = WR0
for s in range(14, 28):
    sl = LSLOT[(s - 14) // 2]
    rd = []
    for t in range(2):
        va, off = slotaddr(sl, t)
        rd += [[f"ds_read_b64_tr_b16 a[{wfr(s,t)+2*hh}:{wfr(s,t)+2*hh+1}], v{va} offset:{off + 2048*(s%2) + 512*hh}"] for hh in range(2)]
    if s % 2 == 0: rd[0] = [waitvm(f"WL{(s-14)//2}")] + rd[0]
    lo = max(cur, WR0 + 3 * (s - 14))
    if s >= 22: assert lo > step_first[s - 22 + 1]
    cur = C.spread(rd, lo, lo + 4)
    assert cur + 3 <= step_first[s], (s, cur)
AR = 112
al = [f"buffer_load_dwordx2 v[{AR+2*i}:{AR+1+2*i}], v{V_AO if i == 0 else 27+i}, s[12:15], s56 offen{SC}" for i in range(8)]
al.append(f"buffer_load_dwordx2 v[20:21], v{V_GO}, s[12:15], s57 offen{SC}")
AG = opt("ag", lasth + 1)
for i, x in enumerate(al): C.put((AG + 1) // 2 * 2 + 2 * (i // opt("ags", 3)), [x])
comb = [f"v_xor_b32 v{AR+1+2*i}, v{V_NONCE}, v{AR+1+2*i}" for i in range(8)] + [f"v_xor_b32 v21, v{V_NONCE}, v21"]
comb += [f"v_or3_b32 v{AR+1}, v{AR+1}, v{AR+3}, v{AR+5}", f"v_or3_b32 v{AR+7}, v{AR+7}, v{AR+9}, v{AR+11}", f"v_or3_b32 v{AR+13}, v{AR+13}, v{AR+15}, v21", f"v_or3_b32 v21, v{AR+1}, v{AR+7}, v{AR+13}"]
a_chk = poll_check(al, comb, "v_cmp_ne_u32 vcc, 0, v21")
FIN = opt("fin", 0)
gp_ = [f"v_sub_f32 v46, 1.0, v{V_G}"]
for i in range(8): gp_ += [f"v_lshlrev_b32 v{48+2*i}, 16, v{AR+2*i}", f"v_and_b32 v{49+2*i}, 0xffff0000, v{AR+2*i}"]
gp2 = [f"v_pk_mul_f32 v[{48+2*i}:{49+2*i}], v[{48+2*i}:{49+2*i}], v[{V_G}:{V_G+1}] op_sel_hi:[1,0]" for i in range(8)]
def rbw(c): return [f"ds_write_b128 v{24+c}, a[{160+16*c+4*i}:{163+16*c+4*i}] offset:{4096*(c-1) + 1024*i}" for i in range(4)]
Q4 = 72 + 84
for i, x in enumerate(rbw(2) + rbw(3)): C.put(Q4 + 3 + 2 * i, [x])
for i, x in enumerate(rbw(1)): C.put(min(NG - NDEF + 2 + i, NG - 1), [x])
if FIN:
    kchk = npoll - 1
    def a_test(pp):
        if STAMPS: pp("s_mov_b32 s95, 0")
        pp("v_cmp_ne_u32 vcc, 0, v21"); pp(f"s_cbranch_vccnz L_slow{kchk}"); pp(f"L_back{kchk}:")
        if STAMPS: pp(f"v_writelane_b32 v{V_TS}, s95, {58+kchk}")
    a_test.cost = 16; a_test.alu = True
    AC = opt("ac", NG - 14)
    e_ = C.spread(comb + [a_test] + gp_, AC, NG - NDEF + 2)
allm = MM + [g2m(s, c) for (s, c) in g2seq]
for gi, m in enumerate(allm):
    if gi in (72 + 28, 72 + 56, 72 + 84): stamp("G2 quarter")
    p(m)
    if gi == 71: stamp("conv end")
    for i in C.items(gi): p.add(i)
stamp("G2 end")
if not FIN: p.add(a_chk)
p("s_waitcnt lgkmcnt(0)\ns_barrier")
for i in range(4):
    for c in range(3):
        a = 64 + 16 * c + 4 * i
        p(f"ds_read_b128 v[{a}:{a+3}], v24 offset:{4096*c + 1024*i}")
for x in ([] if FIN else gp_) + gp2: p(x)
A0 = 240
for i4 in range(4):
    for i in range(4*i4, 4*i4+4, 2):
        p(f"v_pk_add_f32 v[{A0+i}:{A0+i+1}], v[{A0+i}:{A0+i+1}], v[{64+i}:{65+i}]")
        p(f"v_pk_add_f32 v[{80+i}:{81+i}], v[{80+i}:{81+i}], v[{96+i}:{97+i}]")
    for i in range(4*i4, 4*i4+4, 2):
        p(f"v_pk_add_f32 v[{A0+i}:{A0+i+1}], v[{A0+i}:{A0+i+1}], v[{80+i}:{81+i}]")
    for i in range(4*i4, 4*i4+4, 2):
        p(f"v_pk_fma_f32 v[{A0+i}:{A0+i+1}], v[{A0+i}:{A0+i+1}], v[46:47], v[{48+i}:{49+i}] op_sel_hi:[1,0,1]")
    for i in range(2*i4, 2*i4+2):
        p(f"v_cvt_pk_bf16_f32 v{120+i}, v{A0+2*i}, v{A0+2*i+1}")
    if i4 % 2: p(f"buffer_store_dwordx4 v[{120+4*(i4//2)}:{123+4*(i4//2)}], v{V_OUT}, s[20:23], s84 offen offset:{16*(i4//2)}{OSC}")
if STAMPS:
    stamp("stores issued")
    p("s_waitcnt vmcnt(0)")
    stamp("end")
    p(f"""s_lshl_b32 s68, s2, 2
          s_add_u32 s68, s68, s24
          s_lshl_b32 s68, s68, 8
          s_add_u32 s68, s68, {TS_OFF}
          v_lshlrev_b32 v14, 2, v1
          buffer_store_dword v{V_TS}, v14, s[12:15], s68 offen""")
if ENC:
    if ENC == "end": p("s_waitcnt vmcnt(0)"); stamp("end")
    p("""s_memrealtime s[98:99]
         s_waitcnt lgkmcnt(0)
         s_lshl_b32 s101, s101, 2
         s_min_u32 s101, s101, 20000
         s_mov_b32 s100, s98
         L_enc:
         s_memrealtime s[98:99]
         s_waitcnt lgkmcnt(0)
         s_sub_u32 s97, s98, s100
         s_cmp_lt_u32 s97, s101
         s_cbranch_scc1 L_enc""")
p("L_end:\ns_endpgm")

h = Prog()
hsn = 4
def hstamp(name):
    global hsn
    if not STAMPS or "few" in OPT: return
    h("s_memtime s[96:97]\ns_memrealtime s[98:99]\ns_waitcnt lgkmcnt(0)")
    h(f"v_writelane_b32 v{V_TS}, s96, {2*hsn}\nv_writelane_b32 v{V_TS}, s98, {2*hsn+1}"); hsn += 1
HXS = 1040
HX = 49152
h(f"""L_helper:
     s_mov_b32 s75, {BIG:#x}
     s_and_b32 s79, s2, 7
     s_lshl_b32 s79, s79, 2
     s_add_u32 s79, s79, s30
     s_sub_u32 s79, s79, 28
     s_lshl_b32 s80, s79, 2
     s_add_u32 s80, s80, s24
     s_mul_i32 s81, s80, 14336
     v_min_u32 v44, 55, v1
     v_lshl_add_u32 v44, v44, 7, s81
     s_barrier
     global_load_dword a255, {"v40" if "nopf" in OPT else "v44"}, s[56:57]
     s_add_u32 s81, s81, 7168
     s_lshl_b32 s84, s79, 16
     s_lshl_b32 s68, s24, 14
     s_add_u32 s84, s84, s68
     s_mul_i32 s83, s24, {16*HXS}
     s_add_u32 s83, s83, {HX}
     s_mov_b32 s82, s83
     s_branch L_hjoin
     L_helper1:
     v_min_u32 v44, 55, v1
     v_lshl_add_u32 v44, v44, 7, s81
     s_waitcnt vmcnt(2)""")
xl = [L(f"s_mov_b32 m0, s83\ns_add_u32 s83, s83, {HXS}\nbuffer_load_dwordx4 v{V_L16}, s[4:7], s84 offen lds\ns_add_u32 s84, s84, 1024") for i in range(16)]
hd = [["global_load_dword a253, %s, s[56:57]" % ("v40" if "nopf" in OPT else "v44")], [], [], []] + [[], [], [], []] * opt("hgap", 2) + xl
hrest, hdma1 = kgen(h, hd, opt("hearly", 3), False, opt("hafter", 10))
hstamp("K done")
while hrest: hdma1()
h(f"global_load_dwordx4 v[124:127], v{V_L16}, s[58:59]")
h(nonce_ld)
tk["hx"] = h.mark()
h(f"""v_add_u32 v14, s82, v{V_L16}
     v_mov_b32 v12, {BIG:#x}
     v_cmp_eq_u32 vcc, 0, v0
     s_lshl_b32 s86, s79, 7
     s_add_u32 s86, s86, {F1_OFF}
     v_cndmask_b32 v13, v12, 0, vcc
     v_lshl_add_u32 v10, v4, 2, v5
     v_mul_u32_u24 v10, {HXS}, v10
     v_lshl_add_u32 v10, v3, 3, v10
     s_lshl_b32 s68, s24, 8
     s_add_u32 s68, s68, {HX}
     v_add_u32 v45, s68, v10
     s_lshl_b32 s81, s80, 14
     s_add_u32 s81, s81, {U4T_OFF}""")
h.wait_vm(tk["hx"])
h.add(nonce_check())
h("s_barrier")
hstamp("x landed")
for cg in range(8):
    r = 128 + 8 * cg
    for blk in range(2):
        for hh in range(2): h(f"ds_read_b64_tr_b16 v[{r+blk*4+hh*2}:{r+blk*4+hh*2+1}], v45 offset:{(32*blk + 16*hh) * HXS + 32*cg}")
for i in range(16): h(f"ds_read_b128 v[{192+4*i}:{195+4*i}], v14 offset:{HXS*i}")
dots = [f"v_mov_b32 v{64+i}, 0" for i in range(16)]
for k in range(4): dots += [f"v_dot2_f32_bf16 v{64+i}, v{192+4*i+k}, v{124+k}, v{64+i}" for i in range(16)]
for i in range(16):
    h(f"buffer_store_dwordx4 v[{128+4*i}:{131+4*i}], v{V_L16}, s[12:15], s81 offen offset:{1024*(i%4)}{SC}")
    if i % 4 == 3: h("s_add_u32 s81, s81, 4096")
    if i >= 6:
        for x in dots[8*(i-6):8*(i-5)]: h(x)
hstamp("u4 stores issued")
for sh in ("row_shr:1", "row_shr:2", "row_shr:4", "row_shr:8"):
    for i in range(16): h(f"v_add_f32_dpp v{64+i}, v{64+i}, v{64+i} {sh} row_mask:0xf bank_mask:0xf bound_ctrl:0")
for i in range(16): h(f"v_add_f32_dpp v{64+i}, v{64+i}, v{64+i} row_bcast:15 row_mask:0xa bank_mask:0xf")
for i in range(16): h(f"v_add_f32_dpp v{64+i}, v{64+i}, v{64+i} row_bcast:31 row_mask:0xc bank_mask:0xf")
h(f"s_waitcnt vmcnt(0) lgkmcnt(0)\ns_barrier\nbuffer_store_dword v{V_NONCE}, v13, s[12:15], s86 offen{SC}")
hstamp("FU issued")
h("v_mov_b32 v80, 0")
for i in range(0, 16, 4):
    for k in range(4): h(f"v_readlane_b32 s{36+k}, v{64+i+k}, 63")
    for k in range(4): h(f"v_writelane_b32 v80, s{36+k}, {i+k}")
h(f"""v_cvt_pk_bf16_f32 v80, v80, v80
     v_and_b32 v80, 0xffff0000, v80
     v_mul_f32 v80, {NLOG2E:#x}, v80
     v_exp_f32 v80, v80
     v_cmp_gt_u32 vcc, 16, v1
     v_add_f32 v80, 1.0, v80
     v_rcp_f32 v80, v80
     v_lshlrev_b32 v13, 3, v1
     v_mov_b32 v81, v{V_NONCE}
     v_cvt_pk_bf16_f32 v80, v80, v80
     v_cndmask_b32 v13, v12, v13, vcc
     v_and_b32 v80, 0xffff0000, v80
     s_lshl_b32 s68, s80, 7
     s_add_u32 s68, s68, {G_OFF}
     buffer_store_dwordx2 v[80:81], v13, s[12:15], s68 offen{SC}""")
hstamp("gate done")
for i in pc: h(i)
for i in kf_reads: h(i)
h("s_waitcnt lgkmcnt(0)\ns_barrier")
HIB[0] = 58
free_sl = [sl for sl in range(7) if sl not in [x for _, x in spill]]
hsl = {g: sl for g, sl in spill}
for g in range(NG1):
    if g not in hsl: hsl[g] = free_sl.pop(0)
    for b_ in w2dma(hsl[g], last=(g == 6)):
        for i in b_: h(i)
    tk[f"hg{g}"] = h.mark()
h(f1_ld)
for g in range(NG1):
    if (g, hsl[g]) in spill: continue
    h.wait_vm(tk[f"hg{g}"])
    for i in w2rd(g, hsl[g]): h(i)
h.add(poll_check([f1_ld], [], f1_cmp))
for b_ in u_items:
    for i in b_: h(i)
h("s_waitcnt vmcnt(0) lgkmcnt(0)\ns_barrier")
for i in uf_reads: h(i)
for sl in l1_slots:
    for b_ in w2dma(sl):
        for i in b_: h(i)
for b_ in c1_all:
    for i in b_:
        if not callable(i): h(i)
h("s_waitcnt vmcnt(0) lgkmcnt(0)\ns_barrier")
hstamp("helper joins")
h("s_branch L_cjoin")

body = p.finalize(True) + h.finalize(True) + slow.finalize() + ["L_code_end:"]
hdr = open("cdna_kernels/" + NAME + ".s.ref").read().split("; Override launch")[0]
o = [hdr.rstrip(), "; @launch grid=(256,1,1) block=(256,1,1) lds=163840", '.amdgcn_target "amdgcn-amd-amdhsa--gfx950"\n.text',
     f".globl {KN}\n.p2align 8\n.type {KN},@function\n{KN}:"]
o += [("" if l.endswith(":") else "    ") + l for l in body]
o.append("    s_endpgm")
o.append(f""".section .rodata,"a"
.p2align 6
.amdhsa_kernel {KN}
  .amdhsa_next_free_vgpr 512
  .amdhsa_next_free_sgpr 102
  .amdhsa_accum_offset 256
  .amdhsa_group_segment_fixed_size 0
  .amdhsa_kernarg_size 120
  .amdhsa_user_sgpr_count 2
  .amdhsa_user_sgpr_kernarg_segment_ptr 1
  .amdhsa_system_sgpr_workgroup_id_x 1
.end_amdhsa_kernel""")
open(sys.argv[1], "w").write("\n".join(o) + "\n")
```
